```python
import torch

def _softmax(x, axis=-1):
    return torch.softmax(x, dim=axis)
def _gelu(x):
    return torch.nn.functional.gelu(x, approximate="tanh")
def _silu(x):
    return torch.nn.functional.silu(x)
def _sigmoid(x):
    return torch.sigmoid(x)
def _layernorm(x, axis=-1, eps=1e-5):
    m = x.mean(dim=axis, keepdim=True)
    v = x.var(dim=axis, keepdim=True, unbiased=False)
    return (x - m) / torch.sqrt(v + eps)
def _scatter_add(tgt, idx, src, axis=0):
    return tgt.clone().index_add_(axis, idx, src)
def _segment_sum(src, seg, n):
    out = torch.zeros((n,) + src.shape[1:], dtype=src.dtype)
    return out.index_add_(0, seg, src)
def _pad(x, pw):
    flat = tuple(v for pair in reversed(pw) for v in pair)
    return torch.nn.functional.pad(x, flat)

kernel_name = 'gated_mix__ssm_conv_s4__linear_attn_block__prompt'

def setup_inputs():

    _w = (lambda a: (lambda t: t.to(torch.bfloat16) if t.is_floating_point() else t)(torch.as_tensor(a)))
    def _A_setup():
        B, L, D, N = 1, 2048, 1024, 128
        A_re = -(lambda _x: torch.exp(torch.as_tensor(_x)))((lambda *s: torch.randn(*s, dtype=torch.bfloat16) * 3.2)(D, N))
        A_im = torch.pi * (lambda *s: torch.randn(*s, dtype=torch.bfloat16) * 0.05)(D, N)
        B_re = (lambda *s: torch.randn(*s, dtype=torch.bfloat16) * 0.2)(D, N)
        B_im = (lambda *s: torch.randn(*s, dtype=torch.bfloat16) * 0.2)(D, N)
        C_re = (lambda *s: torch.randn(*s, dtype=torch.bfloat16) * 0.2)(D, N)
        C_im = (lambda *s: torch.randn(*s, dtype=torch.bfloat16) * 0.2)(D, N)
        log_dt = (lambda *s: torch.randn(*s, dtype=torch.bfloat16) * 0.05)(D) * 0.5 - 4.0
        Dskip = (lambda *s: torch.randn(*s, dtype=torch.bfloat16) * 0.1)(D)
        return {
            "u": _w((lambda *s: torch.randn(*s, dtype=torch.bfloat16) * 0.05)(B, L, D)),
            "A_re": _w(A_re),
            "A_im": _w(A_im),
            "B_re": _w(B_re),
            "B_im": _w(B_im),
            "C_re": _w(C_re),
            "C_im": _w(C_im),
            "log_dt": _w(log_dt),
            "Dskip": _w(Dskip),
        }
    _A_in = _A_setup()

    def _B_setup():
        B, S, D = 1, 2048, 1024
        return {
            "x": _w((lambda *s: torch.randn(*s, dtype=torch.bfloat16) * 0.05)(B, S, D)),
            "wqkv": _w((lambda *s: torch.randn(*s, dtype=torch.bfloat16) * 0.8)(D, 3 * D)),
            "wo": _w((lambda *s: torch.randn(*s, dtype=torch.bfloat16) * 0.05)(D, D)),
        }
    _B_in = _B_setup()

    return {
        "A_u": _A_in["u"],
        "A_A_re": _A_in["A_re"],
        "A_A_im": _A_in["A_im"],
        "A_B_re": _A_in["B_re"],
        "A_B_im": _A_in["B_im"],
        "A_C_re": _A_in["C_re"],
        "A_C_im": _A_in["C_im"],
        "A_log_dt": _A_in["log_dt"],
        "A_Dskip": _A_in["Dskip"],
        "B_x": _B_in["x"],
        "B_wqkv": _B_in["wqkv"],
        "B_wo": _B_in["wo"],
        "gate_w": _w((lambda *s: torch.randn(*s, dtype=torch.bfloat16) * 0.05)(1024) * 16.0),
    }

def reference(A_u, A_A_re, A_A_im, A_B_re, A_B_im, A_C_re, A_C_im, A_log_dt, A_Dskip, B_x, B_wqkv, B_wo, gate_w):
    def _A_ref(u, A_re, A_im, B_re, B_im, C_re, C_im, log_dt, Dskip):
        Bsz, L, D = u.shape
        dt = torch.exp(log_dt)[:, None]
        A = A_re + 1j * A_im
        Bc = B_re + 1j * B_im
        Cc = C_re + 1j * C_im
        logdA = dt * A
        dB = dt * Bc
        l = (lambda x, dt: x.to(dt))(torch.arange(L), A_re.dtype)
        P = torch.exp(logdA[:, :, None] * l[None, None, :])
        K = torch.einsum("dn,dnl,dn->dl", Cc, P, dB).real
        L2 = 2 * L
        Kp = _pad(K, ((0, 0), (0, L)))
        up = (lambda x, *d: x.permute(*d))(u, 0, 2, 1)
        up = _pad(up, ((0, 0), (0, 0), (0, L)))
        Kf = (lambda x, axes=(-2,-1): torch.fft.rfft2(x.float(), dim=axes))(Kp[:, None, :], axes=(-2, -1))
        Uf = (lambda x, axes=(-2,-1): torch.fft.rfft2(x.float(), dim=axes))(up[:, :, None, :], axes=(-2, -1))
        Yf = Uf * Kf[None, :, :, :]
        y = (lambda x, s, axes=(-2,-1): torch.fft.irfft2(x, s=s, dim=axes).to(torch.bfloat16))(Yf, (1, L2), axes=(-2, -1))[:, :, 0, :L]
        y = (lambda x, *d: x.permute(*d))(y, 0, 2, 1) + u * Dskip[None, None, :]
        return y

    def _B_ref(x, wqkv, wo):
        B, S, D = x.shape
        H = 32; Dh = D // H
        qkv = (lambda x, *d: x.permute(*d))((x @ wqkv).reshape(B, S, 3, H, Dh), 2, 0, 3, 1, 4)
        q, k, v = qkv[0], qkv[1], qkv[2]
        phi = lambda t: torch.where(t > 0, t + 1, torch.exp(t)) + 1e-6
        pq, pk = phi(q), phi(k)
        kv = torch.einsum("bhsd,bhse->bhde", pk, v)
        z = torch.einsum("bhsd->bhd", pk)
        num = torch.einsum("bhqd,bhde->bhqe", pq, kv)
        den = torch.einsum("bhqd,bhd->bhq", pq, z)[..., None] + 1e-6
        o = num / den
        return (lambda x, *d: x.permute(*d))(o, 0, 2, 1, 3).reshape(B, S, D) @ wo

    x = A_u
    g = _sigmoid((x * gate_w).sum(-1, keepdims=True))
    a = _A_ref(x, A_A_re, A_A_im, A_B_re, A_B_im, A_C_re, A_C_im, A_log_dt, A_Dskip)
    b = _B_ref(x, B_wqkv, B_wo)
    return g * a + (1 - g) * b
```

```python
import sys

WS_UT  = 0x0000000
WS_KB  = 0x0400000
KB_ROW = 5120
WS_PQ  = 0x0900000
WS_KVP = 0x0D00000
WS_ZP  = 0x1100000
WS_O   = 0x1200000
WS_AT  = 0x1600000
WS_G   = 0x1A00000
WS_END = 0x1B00000

out = []
def E(s=""):
    out.append(s)

def srd(dst, lo, hi, nbytes):
    E(f"    s_mov_b32 s{dst}, s{lo}")
    E(f"    s_and_b32 s{dst+1}, s{hi}, 0xffff")
    E(f"    s_mov_b32 s{dst+2}, {hex(nbytes)}")
    E(f"    s_mov_b32 s{dst+3}, 0x00020000")

def srd_ws(dst, lo, hi, off, nbytes):
    E(f"    s_add_u32 s{dst}, s{lo}, {hex(off)}")
    E(f"    s_addc_u32 s{dst+1}, s{hi}, 0")
    E(f"    s_and_b32 s{dst+1}, s{dst+1}, 0xffff")
    E(f"    s_mov_b32 s{dst+2}, {hex(nbytes)}")
    E(f"    s_mov_b32 s{dst+3}, 0x00020000")

def kernel_begin(name):
    E(".text")
    E(f".globl {name}")
    E(".p2align 8")
    E(f".type {name},@function")
    E(f"{name}:")

def kernel_desc(name, vgpr, sgpr=102):
    acc = (vgpr + 3) // 4 * 4
    E('.section .rodata,"a"')
    E(".p2align 6")
    E(f".amdhsa_kernel {name}")
    E(f"  .amdhsa_next_free_vgpr {vgpr}")
    E(f"  .amdhsa_next_free_sgpr {sgpr}")
    E(f"  .amdhsa_accum_offset {acc}")
    E("  .amdhsa_group_segment_fixed_size 0")
    E("  .amdhsa_kernarg_size 128")
    E("  .amdhsa_user_sgpr_count 2")
    E("  .amdhsa_user_sgpr_kernarg_segment_ptr 1")
    E("  .amdhsa_system_sgpr_workgroup_id_x 1")
    E(".end_amdhsa_kernel")

LOG2E = 0x3fb8aa3b
INV2PI = 0x3e22f983

def role_transpose(L):
    E(f"{L}_tr:")
    srd(8, 4, 5, 0x400000)
    srd_ws(12, 6, 7, WS_UT, 0x400000)
    E("    v_and_b32 v1, 63, v0")
    E("    v_lshrrev_b32 v2, 6, v0")
    E("    s_nop 1")
    E("    v_readfirstlane_b32 s20, v2")
    E("    s_nop 3")
    E("    v_lshrrev_b32 v3, 4, v1")
    E("    v_lshlrev_b32 v3, 11, v3")
    E("    v_and_b32 v4, 15, v1")
    E("    v_lshlrev_b32 v4, 4, v4")
    E("    v_add_u32 v3, v3, v4")
    E("    s_lshl_b32 s21, s2, 17")
    E("    s_lshl_b32 s22, s20, 15")
    E("    s_add_u32 s21, s21, s22")
    E("    s_lshl_b32 s23, s20, 12")
    E("    v_and_b32 v5, 15, v1")
    E("    v_lshrrev_b32 v5, 2, v5")
    E("    v_lshlrev_b32 v5, 8, v5")
    E("    v_and_b32 v6, 3, v1")
    E("    v_lshlrev_b32 v6, 3, v6")
    E("    v_lshrrev_b32 v7, 4, v1")
    E("    v_lshlrev_b32 v7, 5, v7")
    E("    v_add3_u32 v5, v5, v6, v7")
    E("    v_add_u32 v5, s23, v5")
    E("    v_and_b32 v6, 15, v1")
    E("    v_lshrrev_b32 v7, 4, v1")
    E("    v_lshl_add_u32 v6, v7, 4, v6")
    E("    v_lshlrev_b32 v6, 12, v6")
    E("    s_lshl_b32 s24, s2, 7")
    E("    s_lshl_b32 s25, s20, 5")
    E("    s_add_u32 s24, s24, s25")
    E("    v_add_u32 v6, s24, v6")
    E("    s_mov_b32 s26, 0")
    E(f"{L}_tr_loop:")
    E("    s_lshl_b32 s27, s26, 8")
    E("    s_add_u32 s27, s27, s21")
    for i in range(4):
        E(f"    s_add_u32 s28, s23, {i*1024}")
        E("    s_mov_b32 m0, s28")
        E(f"    s_add_u32 s29, s27, {i*8192}")
        E("    s_nop 0")
        E("    buffer_load_dwordx4 v3, s[8:11], s29 offen lds")
    E("    s_waitcnt vmcnt(0)")
    E("    s_lshl_b32 s30, s26, 19")
    for p in range(2):
        for q in range(4):
            E(f"    ds_read_b64_tr_b16 v[{10+p*8+2*q}:{11+p*8+2*q}], v5 offset:{q*1024+p*128}")
    E("    s_waitcnt lgkmcnt(0)")
    for p in range(2):
        E(f"    s_add_u32 s31, s30, {p*64*4096}")
        E(f"    buffer_store_dwordx4 v[{10+p*8}:{13+p*8}], v6, s[12:15], s31 offen")
        E(f"    buffer_store_dwordx4 v[{14+p*8}:{17+p*8}], v6, s[12:15], s31 offen offset:16")
    E("    s_waitcnt vmcnt(0)")
    E("    s_add_u32 s26, s26, 1")
    E("    s_cmp_lt_u32 s26, 8")
    E(f"    s_cbranch_scc1 {L}_tr_loop")
    E("    s_endpgm")

def cexp(dre, dim, lreg, tmp, are, aim):
    E(f"    v_mul_f32 v{tmp}, v{are}, v{lreg}")
    E(f"    v_mul_f32 v{tmp+1}, v{aim}, v{lreg}")
    E(f"    v_mul_f32 v{tmp}, s40, v{tmp}")
    E(f"    v_mul_f32 v{tmp+1}, s41, v{tmp+1}")
    E(f"    v_exp_f32 v{tmp}, v{tmp}")
    E(f"    v_fract_f32 v{tmp+1}, v{tmp+1}")
    E(f"    v_cos_f32 v{dre}, v{tmp+1}")
    E(f"    v_sin_f32 v{dim}, v{tmp+1}")
    E(f"    s_nop 0")
    E(f"    v_mul_f32 v{dre}, v{dre}, v{tmp}")
    E(f"    v_mul_f32 v{dim}, v{dim}, v{tmp}")

def csq(dre, dim, sre, sim_, tmp):
    E(f"    v_mul_f32 v{tmp}, v{sim_}, v{sim_}")
    E(f"    v_mul_f32 v{dim}, v{sre}, v{sim_}")
    E(f"    v_fma_f32 v{dre}, v{sre}, v{sre}, -v{tmp}")
    E(f"    v_add_f32 v{dim}, v{dim}, v{dim}")

def cmul(dre, dim, are, aim, bre, bim):
    E(f"    v_mul_f32 v{dre}, v{are}, v{bre}")
    E(f"    v_mul_f32 v{dim}, v{are}, v{bim}")
    E(f"    v_fma_f32 v{dre}, -v{aim}, v{bim}, v{dre}")
    E(f"    v_fma_f32 v{dim}, v{aim}, v{bre}, v{dim}")

KG_LDS_WAVE = 12800
def role_kgen(L):
    E(f"{L}_kg:")
    E("    s_load_dwordx4 s[44:47], s[0:1], 8")
    E("    s_load_dwordx4 s[48:51], s[0:1], 24")
    E("    s_load_dwordx4 s[52:55], s[0:1], 40")
    E("    s_load_dwordx2 s[56:57], s[0:1], 56")
    E("    s_waitcnt lgkmcnt(0)")
    srd(60, 44, 45, 0x40000)
    srd(64, 46, 47, 0x40000)
    srd(68, 48, 49, 0x40000)
    srd(72, 50, 51, 0x40000)
    srd(76, 52, 53, 0x40000)
    srd(80, 54, 55, 0x40000)
    srd(84, 56, 57, 0x800)
    srd_ws(12, 6, 7, WS_KB, 1024*KB_ROW)
    E(f"    s_mov_b32 s40, {hex(LOG2E)}")
    E(f"    s_mov_b32 s41, {hex(INV2PI)}")
    E("    v_and_b32 v1, 63, v0")
    E("    v_lshrrev_b32 v2, 6, v0")
    E("    s_nop 1")
    E("    v_readfirstlane_b32 s20, v2")
    E("    s_nop 3")
    E("    s_lshl_b32 s21, s2, 2")
    E("    s_add_u32 s21, s21, s20")
    E(f"    s_mul_i32 s22, s20, {KG_LDS_WAVE}")
    E("    s_lshl_b32 s23, s21, 1")
    E("    v_mov_b32 v3, s23")
    E("    buffer_load_ushort v4, v3, s[84:87], 0 offen")
    E("    v_and_b32 v5, 15, v1")
    E("    v_lshrrev_b32 v6, 4, v1")
    E("    v_cvt_f32_u32 v7, v5")
    E("    v_mul_f32 v8, 16.0, v7")
    E("    v_add_f32 v9, v8, v8")
    E("    v_add_f32 v9, 0x43800000, v9")
    E("    v_lshlrev_b32 v10, 6, v6")
    E("    s_lshl_b32 s23, s21, 8")
    E("    v_add_u32 v10, s23, v10")
    E("    s_waitcnt vmcnt(0)")
    E("    v_lshlrev_b32 v4, 16, v4")
    E("    v_mul_f32 v4, s40, v4")
    E("    v_exp_f32 v4, v4")
    E("    s_nop 0")
    E("    v_cvt_pk_bf16_f32 v4, v4, v4")
    E("    v_lshlrev_b32 v4, 16, v4")
    for r in range(16):
        E(f"    v_mov_b32 v{64+r}, 0")
    for i, s in enumerate((60, 64, 68, 72, 76, 80)):
        E(f"    buffer_load_ushort v{12+i}, v10, s[{s}:{s+3}], 0 offen")
    E("    s_mov_b32 s26, 0")
    E(f"{L}_kg_loop:")
    E("    s_waitcnt vmcnt(0)")
    for i in range(6):
        E(f"    v_lshlrev_b32 v{18+i}, 16, v{12+i}")
    E("    v_add_u32 v10, 2, v10")
    E("    s_cmp_lt_u32 s26, 31")
    E(f"    s_cbranch_scc0 {L}_kg_nopf")
    for i, s in enumerate((60, 64, 68, 72, 76, 80)):
        E(f"    buffer_load_ushort v{12+i}, v10, s[{s}:{s+3}], 0 offen")
    E(f"{L}_kg_nopf:")
    E("    v_mul_f32 v18, v4, v18")
    E("    v_mul_f32 v19, v4, v19")
    E("    v_mul_f32 v20, v4, v20")
    E("    v_mul_f32 v21, v4, v21")
    cmul(24, 25, 22, 23, 20, 21)
    cexp(26, 27, 7, 60, 18, 19)
    cexp(34, 35, 8, 60, 18, 19)
    cexp(36, 37, 9, 60, 18, 19)
    csq(28, 29, 26, 27, 60)
    csq(38, 39, 36, 37, 61)
    csq(30, 31, 28, 29, 60)
    csq(40, 41, 38, 39, 61)
    csq(32, 33, 30, 31, 60)
    for s in range(4):
        cmul(42+2*s, 43+2*s, 24, 25, 34+2*s, 35+2*s)
    for s in range(4):
        E(f"    v_xor_b32 v{27+2*s}, 0x80000000, v{27+2*s}")
    E("    s_nop 1")
    for s in range(4):
        E(f"    v_mfma_f32_16x16x4_f32 v[{64+4*s}:{67+4*s}], v{42+2*s}, v{26+2*s}, v[{64+4*s}:{67+4*s}]")
    for s in range(4):
        E(f"    v_mfma_f32_16x16x4_f32 v[{64+4*s}:{67+4*s}], v{43+2*s}, v{27+2*s}, v[{64+4*s}:{67+4*s}]")
    E("    s_add_u32 s26, s26, 1")
    E("    s_cmp_lt_u32 s26, 32")
    E(f"    s_cbranch_scc1 {L}_kg_loop")
    E("    s_nop 7")
    E("    s_nop 7")
    E("    v_lshlrev_b32 v11, 6, v6")
    E("    v_add_u32 v11, v11, v5")
    for s in range(4):
        base = [0, 256, 512, 1024][s]
        E(f"    v_lshlrev_b32 v12, {s+2}, v11")
        E(f"    v_add_u32 v12, s22, v12")
        for r in range(4):
            E(f"    ds_write_b32 v12, v{64+4*s+r} offset:{base*4 + r*16*(1<<s)*4}")
    E("    s_waitcnt lgkmcnt(0)")
    E(f"    s_mul_i32 s23, s21, {KB_ROW}")
    E("    v_lshlrev_b32 v13, 4, v1")
    E("    v_add_u32 v13, s23, v13")
    E("    v_lshlrev_b32 v14, 3, v1")
    for it in range(4):
        for j in range(8):
            E(f"    v_sub_u32 v{20+j}, {2047 - it*512 - j}, v14")
            E(f"    v_cvt_f32_u32 v{20+j}, v{20+j}")
            E(f"    v_cvt_pk_bf16_f32 v{20+j}, v{20+j}, v{20+j}")
            E(f"    v_lshlrev_b32 v{20+j}, 16, v{20+j}")
            E(f"    v_cvt_u32_f32 v{20+j}, v{20+j}")
            E(f"    v_lshlrev_b32 v{20+j}, 2, v{20+j}")
            E(f"    v_add_u32 v{20+j}, s22, v{20+j}")
        for j in range(8):
            E(f"    ds_read_b32 v{30+j}, v{20+j}")
        E("    s_waitcnt lgkmcnt(0)")
        for j in range(4):
            E(f"    v_cvt_pk_bf16_f32 v{40+j}, v{30+2*j}, v{31+2*j}")
        E(f"    buffer_store_dwordx4 v[40:43], v13, s[12:15], 0 offen offset:{it*1024}")
        E("    s_nop 1")
    for j in range(4):
        E(f"    v_mov_b32 v{40+j}, 0")
    E("    s_mov_b32 s23, 4096")
    E("    buffer_store_dwordx4 v[40:43], v13, s[12:15], s23 offen")
    E("    s_endpgm")

CV_LDS_WAVE = 13312
def role_conv(L):
    E(f"{L}_cv:")
    E("    s_load_dwordx2 s[44:45], s[0:1], 64")
    E("    s_waitcnt lgkmcnt(0)")
    srd(60, 44, 45, 0x800)
    srd_ws(8, 6, 7, WS_KB, 1024*KB_ROW)
    srd_ws(12, 6, 7, WS_UT, 0x400000)
    srd_ws(16, 6, 7, WS_AT, 0x400000)
    E("    v_and_b32 v1, 63, v0")
    E("    v_lshrrev_b32 v2, 6, v0")
    E("    s_nop 1")
    E("    v_readfirstlane_b32 s20, v2")
    E("    s_nop 3")
    E("    s_lshl_b32 s21, s2, 2")
    E("    s_add_u32 s21, s21, s20")
    E(f"    s_mul_i32 s22, s20, {CV_LDS_WAVE}")
    E("    v_lshlrev_b32 v3, 4, v1")
    E(f"    s_mul_i32 s23, s21, {KB_ROW}")
    for i in range(5):
        E(f"    s_add_u32 s24, s22, {i*1024}")
        E("    s_mov_b32 m0, s24")
        E(f"    s_add_u32 s25, s23, {i*1024}")
        E("    s_nop 0")
        E("    buffer_load_dwordx4 v3, s[8:11], s25 offen lds")
    E("    s_lshl_b32 s23, s21, 12")
    for i in range(4):
        E(f"    s_add_u32 s24, s22, {5120+4096+i*1024}")
        E("    s_mov_b32 m0, s24")
        E(f"    s_add_u32 s25, s23, {i*1024}")
        E("    s_nop 0")
        E("    buffer_load_dwordx4 v3, s[12:15], s25 offen lds")
    E("    s_lshl_b32 s26, s21, 1")
    E("    v_mov_b32 v4, s26")
    E("    buffer_load_ushort v4, v4, s[60:63], 0 offen")
    for j in range(4):
        E(f"    v_mov_b32 v{8+j}, 0")
    E(f"    v_add_u32 v5, s22, v3")
    for i in range(4):
        E(f"    ds_write_b128 v5, v[8:11] offset:{5120+i*1024}")
    E("    v_and_b32 v6, 31, v1")
    E("    v_lshrrev_b32 v7, 5, v1")
    E("    v_lshlrev_b32 v8, 3, v7")
    E("    v_sub_u32 v8, v8, v6")
    E("    v_add_u32 v8, 31, v8")
    E("    v_lshlrev_b32 v8, 1, v8")
    E("    v_add_u32 v8, s22, v8")
    E("    v_add_u32 v9, 1, v6")
    E("    v_lshlrev_b32 v9, 6, v9")
    E("    v_lshl_add_u32 v9, v7, 4, v9")
    E(f"    v_add_u32 v9, {5120}, v9")
    E("    v_add_u32 v9, s22, v9")
    for r in range(32):
        E(f"    v_mov_b32 v{32+r}, 0")
    E("    s_waitcnt vmcnt(0) lgkmcnt(0)")
    def fr(b, i): return 64 + b*32 + i*4
    def reads(k, b):
        for s in range(2):
            E(f"    ds_read_b128 v[{fr(b,s)}:{fr(b,s)+3}], v8 offset:{2*(2016-(32*k-16*s))}")
        for s in range(2):
            E(f"    ds_read_b128 v[{fr(b,2+s)}:{fr(b,2+s)+3}], v8 offset:{2*(2016-(32*(k+32)-16*s))}")
        for j in range(2):
            for s in range(2):
                E(f"    ds_read_b128 v[{fr(b,4+2*j+s)}:{fr(b,4+2*j+s)+3}], v9 offset:{(32*j-k+63)*64+32*s}")
    reads(0, 0)
    for k in range(32):
        b = k & 1
        if k < 31:
            reads(k+1, b^1)
            E("    s_waitcnt lgkmcnt(8)")
        else:
            E("    s_waitcnt lgkmcnt(0)")
        for s in range(2):
            E(f"    v_mfma_f32_32x32x16_bf16 v[32:47], v[{fr(b,s)}:{fr(b,s)+3}], v[{fr(b,4+s)}:{fr(b,4+s)+3}], v[32:47]")
            E(f"    v_mfma_f32_32x32x16_bf16 v[48:63], v[{fr(b,s)}:{fr(b,s)+3}], v[{fr(b,6+s)}:{fr(b,6+s)+3}], v[48:63]")
            E(f"    v_mfma_f32_32x32x16_bf16 v[48:63], v[{fr(b,2+s)}:{fr(b,2+s)+3}], v[{fr(b,4+s)}:{fr(b,4+s)+3}], v[48:63]")
    E("    v_lshlrev_b32 v4, 16, v4")
    E("    v_lshlrev_b32 v10, 6, v6")
    E("    v_lshl_add_u32 v10, v7, 3, v10")
    E("    v_add_u32 v11, s22, v10")
    E("    s_lshl_b32 s23, s21, 12")
    E("    v_add_u32 v10, s23, v10")
    for j in range(2):
        for a in range(4):
            E(f"    ds_read_b64 v[{64+(j*4+a)*2}:{65+(j*4+a)*2}], v11 offset:{5120+4096+j*2048+a*16}")
    E("    s_nop 7")
    E("    s_waitcnt lgkmcnt(0)")
    for j in range(2):
        for a in range(4):
            ub = 64+(j*4+a)*2
            acc = 32 + j*16 + a*4
            E(f"    v_lshlrev_b32 v20, 16, v{ub}")
            E(f"    v_and_b32 v21, 0xffff0000, v{ub}")
            E(f"    v_lshlrev_b32 v22, 16, v{ub+1}")
            E(f"    v_and_b32 v23, 0xffff0000, v{ub+1}")
            for q in range(4):
                E(f"    v_mul_f32 v{20+q}, v{20+q}, v4")
            E("    v_cvt_pk_bf16_f32 v24, v20, v21")
            E("    v_cvt_pk_bf16_f32 v25, v22, v23")
            E(f"    v_cvt_pk_bf16_f32 v26, v{acc}, v{acc+1}")
            E(f"    v_cvt_pk_bf16_f32 v27, v{acc+2}, v{acc+3}")
            E("    v_lshlrev_b32 v20, 16, v24")
            E("    v_and_b32 v21, 0xffff0000, v24")
            E("    v_lshlrev_b32 v22, 16, v25")
            E("    v_and_b32 v23, 0xffff0000, v25")
            E("    v_lshlrev_b32 v28, 16, v26")
            E("    v_and_b32 v29, 0xffff0000, v26")
            E("    v_lshlrev_b32 v30, 16, v27")
            E("    v_and_b32 v31, 0xffff0000, v27")
            for q in range(4):
                E(f"    v_add_f32 v{20+q}, v{20+q}, v{28+q}")
            E(f"    v_cvt_pk_bf16_f32 v{ub}, v20, v21")
            E(f"    v_cvt_pk_bf16_f32 v{ub+1}, v22, v23")
            E(f"    buffer_store_dwordx2 v[{ub}:{ub+1}], v10, s[16:19], 0 offen offset:{j*2048+a*16}")
    E("    s_endpgm")


def unpack(d0, d1, src):
    E(f"    v_lshlrev_b32 v{d0}, 16, v{src}")
    E(f"    v_and_b32 v{d1}, 0xffff0000, v{src}")

def phi_pair(dst, a0, a1, t):
    E(f"    v_cvt_pk_bf16_f32 v{t}, v{a0}, v{a1}")
    unpack(t+1, t+2, t)
    E(f"    v_add_f32 v{t+3}, 1.0, v{t+1}")
    E(f"    v_add_f32 v{t+4}, 1.0, v{t+2}")
    E(f"    v_mul_f32 v{t+5}, s40, v{t+1}")
    E(f"    v_mul_f32 v{t+6}, s40, v{t+2}")
    E(f"    v_exp_f32 v{t+5}, v{t+5}")
    E(f"    v_exp_f32 v{t+6}, v{t+6}")
    E(f"    v_cvt_pk_bf16_f32 v{t+3}, v{t+3}, v{t+4}")
    E(f"    v_cmp_lt_f32 vcc, 0, v{t+1}")
    E(f"    v_cvt_pk_bf16_f32 v{t+5}, v{t+5}, v{t+6}")
    unpack(t+4, t+6, t+3)
    E(f"    v_lshlrev_b32 v{t+3}, 16, v{t+5}")
    E(f"    v_and_b32 v{t+5}, 0xffff0000, v{t+5}")
    E(f"    v_cndmask_b32 v{t+3}, v{t+3}, v{t+4}, vcc")
    E(f"    v_cmp_lt_f32 vcc, 0, v{t+2}")
    E(f"    v_add_f32 v{t+3}, s42, v{t+3}")
    E(f"    s_nop 0")
    E(f"    v_cndmask_b32 v{t+5}, v{t+5}, v{t+6}, vcc")
    E(f"    v_add_f32 v{t+5}, s42, v{t+5}")
    E(f"    v_cvt_pk_bf16_f32 v{dst}, v{t+3}, v{t+5}")

EPS6 = 0x358637bd

def role_qkv(L):
    E(f"{L}_qkv:")
    E("    s_load_dwordx2 s[44:45], s[0:1], 80")
    E("    s_waitcnt lgkmcnt(0)")
    srd(8, 4, 5, 0x400000)
    srd(12, 44, 45, 0x600000)
    srd_ws(16, 6, 7, WS_PQ, 0x400000)
    srd_ws(60, 6, 7, WS_KVP, 0x400000)
    srd_ws(64, 6, 7, WS_ZP, 0x40000)
    E(f"    s_mov_b32 s40, {hex(LOG2E)}")
    E(f"    s_mov_b32 s42, {hex(EPS6)}")
    E("    v_and_b32 v1, 63, v0")
    E("    v_lshrrev_b32 v2, 6, v0")
    E("    s_nop 1")
    E("    v_readfirstlane_b32 s20, v2")
    E("    s_nop 3")
    E("    s_lshr_b32 s21, s2, 4")
    E("    s_and_b32 s22, s2, 15")
    E("    s_lshr_b32 s23, s20, 1")
    E("    s_and_b32 s24, s20, 1")
    E("    v_lshrrev_b32 v3, 3, v1")
    E("    v_and_b32 v4, 7, v1")
    E("    v_lshrrev_b32 v5, 1, v3")
    E("    v_xor_b32 v4, v4, v5")
    E("    v_lshlrev_b32 v4, 4, v4")
    E("    v_lshl_add_u32 v2, v3, 11, v4")
    E("    v_xor_b32 v3, 64, v2")
    E("    s_lshl_b32 s25, s22, 7")
    for c in range(3):
        E(f"    v_add_u32 v7, {64*c}, v1")
        E("    v_mul_u32_u24 v8, 171, v7")
        E("    v_lshrrev_b32 v8, 12, v8")
        E("    v_mul_u32_u24 v9, 24, v8")
        E("    v_sub_u32 v9, v7, v9")
        E("    v_lshrrev_b32 v10, 1, v8")
        E("    v_and_b32 v10, 1, v10")
        E("    v_lshlrev_b32 v10, 2, v10")
        E("    v_xor_b32 v9, v9, v10")
        E("    v_lshrrev_b32 v10, 3, v9")
        E("    v_and_b32 v9, 7, v9")
        E("    v_lshlrev_b32 v9, 4, v9")
        E("    v_lshl_add_u32 v9, v10, 11, v9")
        E("    v_mul_u32_u24 v8, 6144, v8")
        E(f"    v_add3_u32 v{4+c}, v8, v9, s25")
    E("    v_and_b32 v7, 31, v1")
    E("    v_lshrrev_b32 v8, 5, v1")
    E("    v_lshrrev_b32 v9, 1, v7")
    E("    v_and_b32 v9, 7, v9")
    E("    s_lshl_b32 s26, s23, 13")
    for sidx in range(4):
        E(f"    v_add_u32 v10, {2*sidx}, v8")
        E("    v_xor_b32 v10, v10, v9")
        E("    v_lshlrev_b32 v10, 4, v10")
        E("    v_lshl_add_u32 v10, v7, 7, v10")
        E(f"    v_add_u32 v{12+sidx}, s26, v10")
    E("    v_and_b32 v10, 15, v1")
    E("    v_lshrrev_b32 v10, 2, v10")
    E("    v_lshl_add_u32 v11, v8, 3, v10")
    E("    v_mul_u32_u24 v11, 384, v11")
    E("    v_lshrrev_b32 v10, 1, v10")
    E("    v_lshlrev_b32 v10, 6, v10")
    E("    v_lshrrev_b32 v16, 4, v1")
    E("    v_and_b32 v16, 1, v16")
    E("    v_lshlrev_b32 v16, 5, v16")
    E("    v_and_b32 v17, 3, v1")
    E("    v_lshl_add_u32 v16, v17, 3, v16")
    E("    s_lshl_b32 s26, s24, 6")
    E("    v_add_u32 v16, s26, v16")
    E("    v_xor_b32 v16, v16, v10")
    E("    v_add_u32 v16, v16, v11")
    E("    v_add_u32 v16, 16384, v16")
    E("    s_lshl_b32 s27, s21, 18")
    E("    s_lshl_b32 s28, s20, 16")
    E("    s_add_u32 s27, s27, s28")
    E("    s_mul_i32 s28, s20, 2*8*6144")
    E("    s_mov_b32 s29, 0")
    E("    s_mov_b32 s30, 0")
    def dma():
        E("    s_lshl_b32 s31, s29, 7")
        E("    s_add_u32 s31, s31, s27")
        E("    s_lshl_b32 s32, s20, 12")
        E("    s_add_u32 s32, s32, s30")
        for i in range(4):
            E(f"    s_add_u32 s33, s32, {i*1024}")
            E("    s_mov_b32 m0, s33")
            E(f"    s_add_u32 s34, s31, {i*8*2048}")
            E("    s_nop 0")
            E(f"    buffer_load_dwordx4 v{2+(i&1)}, s[8:11], s34 offen lds")
        E("    s_mul_i32 s31, s29, 64*6144")
        E("    s_add_u32 s31, s31, s28")
        E("    s_mul_i32 s32, s20, 6144")
        E("    s_add_u32 s32, s32, s30")
        E("    s_add_u32 s32, s32, 16384")
        for i in range(6):
            E(f"    s_add_u32 s33, s32, {i*1024}")
            E("    s_mov_b32 m0, s33")
            E(f"    s_add_u32 s34, s31, {(i//3)*8*6144}")
            E("    s_nop 0")
            E(f"    buffer_load_dwordx4 v{4+(i%3)}, s[12:15], s34 offen lds")
        E("    s_add_u32 s29, s29, 1")
        E("    s_add_u32 s30, s30, 40960")
        E("    s_cmp_ge_u32 s30, 122880")
        E("    s_cselect_b32 s30, 0, s30")
    for r in range(96):
        E(f"    v_mov_b32 v{64+r}, 0")
    dma(); dma()
    E("    s_mov_b32 s35, 0")
    E("    s_mov_b32 s36, 0")
    E(f"{L}_qkv_loop:")
    E("    s_cmp_lt_u32 s35, 15")
    E(f"    s_cbranch_scc1 {L}_qkv_w10")
    E("    s_waitcnt vmcnt(0)")
    E(f"    s_branch {L}_qkv_wd")
    E(f"{L}_qkv_w10:")
    E("    s_waitcnt vmcnt(10)")
    E(f"{L}_qkv_wd:")
    E("    s_barrier")
    E("    s_cmp_lt_u32 s29, 16")
    E(f"    s_cbranch_scc0 {L}_qkv_nodma")
    dma()
    E(f"{L}_qkv_nodma:")
    for i in range(5):
        E(f"    v_add_u32 v{17+i}, s36, v{12+i}")
    def rd(sx, bb):
        for mt in range(2):
            E(f"    ds_read_b128 v[{24+bb+4*mt}:{27+bb+4*mt}], v{17+sx} offset:{mt*4096}")
        for p in range(3):
            for kq in range(2):
                E(f"    ds_read_b64_tr_b16 v[{32+bb+4*p+2*kq}:{33+bb+4*p+2*kq}], v21 offset:{sx*16*384+kq*4*384+p*128}")
    rd(0, 0)
    for sx in range(4):
        bb = (sx & 1) * 20
        if sx < 3:
            rd(sx+1, 20-bb)
            E("    s_waitcnt lgkmcnt(8)")
        else:
            E("    s_waitcnt lgkmcnt(0)")
        for mt in range(2):
            A = f"v[{24+bb+4*mt}:{27+bb+4*mt}]"
            for p in range(3):
                Bf = f"v[{32+bb+4*p}:{35+bb+4*p}]"
                acc = 64 + (mt*3+p)*16
                if p == 0:
                    E(f"    v_mfma_f32_32x32x16_bf16 v[{acc}:{acc+15}], {Bf}, {A}, v[{acc}:{acc+15}]")
                else:
                    E(f"    v_mfma_f32_32x32x16_bf16 v[{acc}:{acc+15}], {A}, {Bf}, v[{acc}:{acc+15}]")
    E("    s_add_u32 s36, s36, 40960")
    E("    s_cmp_ge_u32 s36, 122880")
    E("    s_cselect_b32 s36, 0, s36")
    E("    s_add_u32 s35, s35, 1")
    E("    s_cmp_lt_u32 s35, 16")
    E(f"    s_cbranch_scc1 {L}_qkv_loop")
    E("    s_nop 7")
    E("    s_nop 7")
    E("    s_lshl_b32 s26, s21, 7")
    E("    s_lshl_b32 s27, s23, 6")
    E("    s_add_u32 s26, s26, s27")
    E("    v_add_u32 v20, s26, v7")
    E("    v_lshlrev_b32 v20, 11, v20")
    E("    v_lshl_add_u32 v20, v8, 3, v20")
    E("    s_lshl_b32 s26, s22, 7")
    E("    s_lshl_b32 s27, s24, 6")
    E("    s_add_u32 s26, s26, s27")
    E("    v_add_u32 v20, s26, v20")
    for mt in range(2):
        acc = 64 + (mt*3)*16
        for a in range(4):
            phi_pair(22, acc+4*a, acc+4*a+1, 40)
            phi_pair(23, acc+4*a+2, acc+4*a+3, 40)
            E(f"    buffer_store_dwordx2 v[22:23], v20, s[16:19], 0 offen offset:{mt*32*2048+a*16}" if mt*32*2048+a*16 < 4096 else
              f"    s_mov_b32 s27, {mt*32*2048}\n    buffer_store_dwordx2 v[22:23], v20, s[16:19], s27 offen offset:{a*16}")
            E("    s_nop 1")
    E("    v_mov_b32 v21, 0")
    for r in range(16):
        E(f"    v_mov_b32 v{48+r}, 0")
    for mt in range(2):
        kacc = 64 + (mt*3+1)*16
        vacc = 64 + (mt*3+2)*16
        for hh in range(2):
            for j in range(4):
                phi_pair(24+j, kacc+8*hh+2*j, kacc+8*hh+2*j+1, 40)
                unpack(22, 23, 24+j)
                E("    v_add_f32 v21, v21, v22")
                E("    v_add_f32 v21, v21, v23")
                E(f"    v_cvt_pk_bf16_f32 v{28+j}, v{vacc+8*hh+2*j}, v{vacc+8*hh+2*j+1}")
            E("    s_nop 1")
            E("    v_mfma_f32_32x32x16_bf16 v[48:63], v[24:27], v[28:31], v[48:63]")
            E("    s_nop 1")
    E("    s_lshl_b32 s26, s21, 1")
    E("    s_add_u32 s26, s26, s23")
    E("    s_lshl_b32 s27, s22, 1")
    E("    s_add_u32 s27, s27, s24")
    E("    s_lshl_b32 s28, s26, 5")
    E("    s_add_u32 s28, s28, s27")
    E("    s_lshl_b32 s28, s28, 12")
    E("    v_lshlrev_b32 v22, 2, v7")
    E("    v_lshl_add_u32 v22, v8, 9, v22")
    E("    v_add_u32 v22, s28, v22")
    E("    s_nop 7")
    E("    s_nop 3")
    for a in range(4):
        for b in range(4):
            E(f"    buffer_store_dword v{48+4*a+b}, v22, s[60:63], 0 offen offset:{(8*a+b)*128}")
    E("    s_lshl_b32 s28, s26, 13")
    E("    s_lshl_b32 s29, s27, 7")
    E("    s_add_u32 s28, s28, s29")
    E("    v_lshlrev_b32 v22, 2, v7")
    E("    v_lshl_add_u32 v22, v8, 12, v22")
    E("    v_add_u32 v22, s28, v22")
    E("    buffer_store_dword v21, v22, s[64:67], 0 offen")
    E("    s_endpgm")

def role_o(L):
    E(f"{L}_o:")
    srd_ws(8, 6, 7, WS_KVP, 0x400000)
    srd_ws(12, 6, 7, WS_ZP, 0x40000)
    srd_ws(16, 6, 7, WS_PQ, 0x400000)
    srd_ws(60, 6, 7, WS_O, 0x400000)
    E(f"    s_mov_b32 s42, {hex(EPS6)}")
    E("    v_and_b32 v1, 63, v0")
    E("    v_lshrrev_b32 v2, 6, v0")
    E("    s_nop 1")
    E("    v_readfirstlane_b32 s20, v2")
    E("    s_nop 3")
    E("    v_lshlrev_b32 v3, 4, v1")
    E("    s_lshl_b32 s21, s20, 8")
    E("    s_add_u32 s21, s21, s2")
    E("    s_lshl_b32 s21, s21, 12")
    for pp in range(8):
        for i in range(4):
            E(f"    s_add_u32 s22, s21, {pp*32*4096}")
            E(f"    buffer_load_dwordx4 v[{64+(pp*4+i)*4}:{67+(pp*4+i)*4}], v3, s[8:11], s22 offen offset:{i*1024}")
    E("    v_and_b32 v4, 31, v1")
    E("    v_lshlrev_b32 v4, 2, v4")
    E("    s_lshl_b32 s22, s20, 16")
    E("    s_lshl_b32 s23, s2, 7")
    E("    s_add_u32 s22, s22, s23")
    for i in range(16):
        E(f"    s_add_u32 s23, s22, {i*4096}")
        E(f"    buffer_load_dword v{200+i}, v4, s[12:15], s23 offen")
    E("    s_waitcnt vmcnt(0)")
    for pp in range(1, 8):
        for r in range(16):
            E(f"    v_add_f32 v{64+r}, v{64+r}, v{64+pp*16+r}")
    for i in range(1, 16):
        E(f"    v_add_f32 v200, v200, v{200+i}")
    E("    s_lshl_b32 s22, s20, 12")
    E("    v_add_u32 v5, s22, v3")
    for i in range(4):
        E(f"    ds_write_b128 v5, v[{64+4*i}:{67+4*i}] offset:{i*1024}")
    E("    s_lshl_b32 s22, s20, 7")
    E("    v_add_u32 v5, s22, v4")
    E("    ds_write_b32 v5, v200 offset:16384")
    E("    s_waitcnt lgkmcnt(0)")
    E("    s_barrier")
    E("    v_lshrrev_b32 v6, 5, v1")
    E("    v_lshl_add_u32 v7, v6, 10, v4")
    E("    v_lshlrev_b32 v8, 5, v6")
    for s_ in range(2):
        for j in range(8):
            for w in range(4):
                E(f"    ds_read_b32 v{64+(s_*8+j)*4+w}, v7 offset:{w*4096+(16*s_+j)*128}")
    for s_ in range(2):
        for j in range(8):
            for w in range(4):
                E(f"    ds_read_b32 v{128+(s_*8+j)*4+w}, v8 offset:{16384+w*128+(16*s_+j)*4}")
    E("    s_waitcnt lgkmcnt(0)")
    for base in (64, 128):
        for q in range(16):
            b = base + q*4
            E(f"    v_add_f32 v{b}, v{b}, v{b+1}")
            E(f"    v_add_f32 v{b+2}, v{b+2}, v{b+3}")
            E(f"    v_add_f32 v{b}, v{b}, v{b+2}")
    for q in range(8):
        E(f"    v_cvt_pk_bf16_f32 v{20+q}, v{64+8*q}, v{64+8*q+4}")
        E(f"    v_cvt_pk_bf16_f32 v{28+q}, v{128+8*q}, v{128+8*q+4}")
    E("    v_and_b32 v9, 31, v1")
    E("    s_lshl_b32 s22, s20, 9")
    E("    v_add_u32 v10, s22, v9")
    E("    v_lshlrev_b32 v10, 11, v10")
    E("    s_lshl_b32 s22, s2, 6")
    E("    v_add_u32 v10, s22, v10")
    E("    v_lshl_add_u32 v11, v6, 4, v10")
    E("    v_lshl_add_u32 v12, v6, 3, v10")
    E("    s_mov_b32 s23, 0")
    E(f"{L}_o_loop:")
    E("    buffer_load_dwordx4 v[40:43], v11, s[16:19], 0 offen")
    E("    buffer_load_dwordx4 v[44:47], v11, s[16:19], 0 offen offset:32")
    for r in range(32):
        E(f"    v_mov_b32 v{64+r}, 0")
    E("    s_waitcnt vmcnt(0)")
    E("    v_mfma_f32_32x32x16_bf16 v[64:79], v[20:23], v[40:43], v[64:79]")
    E("    v_mfma_f32_32x32x16_bf16 v[80:95], v[28:31], v[40:43], v[80:95]")
    E("    v_mfma_f32_32x32x16_bf16 v[64:79], v[24:27], v[44:47], v[64:79]")
    E("    v_mfma_f32_32x32x16_bf16 v[80:95], v[32:35], v[44:47], v[80:95]")
    E("    s_nop 7")
    E("    s_nop 7")
    E("    v_cvt_pk_bf16_f32 v48, v80, v80")
    E("    v_lshlrev_b32 v48, 16, v48")
    E("    v_add_f32 v48, s42, v48")
    E("    v_cvt_pk_bf16_f32 v48, v48, v48")
    E("    v_lshlrev_b32 v48, 16, v48")
    E("    v_rcp_f32 v48, v48")
    for a in range(4):
        E(f"    v_cvt_pk_bf16_f32 v50, v{64+4*a}, v{65+4*a}")
        E(f"    v_cvt_pk_bf16_f32 v51, v{66+4*a}, v{67+4*a}")
        unpack(52, 53, 50); unpack(54, 55, 51)
        for q in range(4):
            E(f"    v_mul_f32 v{52+q}, v{52+q}, v48")
        E(f"    v_cvt_pk_bf16_f32 v{56+2*(a&1)}, v52, v53")
        E(f"    v_cvt_pk_bf16_f32 v{57+2*(a&1)}, v54, v55")
        E(f"    buffer_store_dwordx2 v[{56+2*(a&1)}:{57+2*(a&1)}], v12, s[60:63], 0 offen offset:{a*16}")
    E("    v_add_u32 v11, 0x10000, v11")
    E("    v_add_u32 v12, 0x10000, v12")
    E("    s_add_u32 s23, s23, 1")
    E("    s_cmp_lt_u32 s23, 16")
    E(f"    s_cbranch_scc1 {L}_o_loop")
    E("    s_endpgm")

def role_gate(L):
    E(f"{L}_gt:")
    E("    s_load_dwordx2 s[44:45], s[0:1], 96")
    E("    s_waitcnt lgkmcnt(0)")
    srd(8, 4, 5, 0x400000)
    srd(12, 44, 45, 0x800)
    srd_ws(16, 6, 7, WS_G, 0x2000)
    E(f"    s_mov_b32 s40, {hex(LOG2E)}")
    E("    v_and_b32 v1, 63, v0")
    E("    v_lshrrev_b32 v2, 6, v0")
    E("    s_nop 1")
    E("    v_readfirstlane_b32 s20, v2")
    E("    s_nop 3")
    E("    v_lshlrev_b32 v3, 4, v1")
    E("    buffer_load_dwordx4 v[4:7], v3, s[12:15], 0 offen")
    E("    buffer_load_dwordx4 v[8:11], v3, s[12:15], 0 offen offset:1024")
    E("    s_lshl_b32 s21, s2, 2")
    E("    s_add_u32 s21, s21, s20")
    E("    s_lshl_b32 s21, s21, 3")
    E("    s_lshl_b32 s22, s21, 11")
    for r in range(8):
        E(f"    s_add_u32 s23, s22, {r*2048}")
        E(f"    buffer_load_dwordx4 v[{64+r*8}:{67+r*8}], v3, s[8:11], s23 offen")
        E(f"    buffer_load_dwordx4 v[{68+r*8}:{71+r*8}], v3, s[8:11], s23 offen offset:1024")
    E("    s_waitcnt vmcnt(0)")
    for i in range(8):
        unpack(16+2*i, 17+2*i, 4+i)
    for r in range(8):
        E(f"    v_mov_b32 v{40+r}, 0")
        for i in range(8):
            unpack(32, 33, 64+r*8+i)
            E(f"    v_mul_f32 v32, v32, v{16+2*i}")
            E(f"    v_mul_f32 v33, v33, v{17+2*i}")
            E("    v_cvt_pk_bf16_f32 v32, v32, v33")
            unpack(33, 34, 32)
            E(f"    v_add_f32 v{40+r}, v{40+r}, v33")
            E(f"    v_add_f32 v{40+r}, v{40+r}, v34")
    for mod in ("row_shr:1", "row_shr:2", "row_shr:4", "row_shr:8", "row_bcast:15 row_mask:0xa", "row_bcast:31 row_mask:0xc"):
        E("    s_nop 1")
        for r in range(8):
            E(f"    v_add_f32_dpp v{40+r}, v{40+r}, v{40+r} {mod}")
    E("    s_nop 1")
    for r in range(8):
        E(f"    v_cvt_pk_bf16_f32 v{40+r}, v{40+r}, v{40+r}")
        E(f"    v_lshlrev_b32 v{40+r}, 16, v{40+r}")
        E(f"    v_mul_f32 v{40+r}, s40, v{40+r}")
        E(f"    v_exp_f32 v{40+r}, -v{40+r}")
        E("    s_nop 0")
        E(f"    v_add_f32 v{40+r}, 1.0, v{40+r}")
        E(f"    v_rcp_f32 v{40+r}, v{40+r}")
        E("    s_nop 0")
        E(f"    v_cvt_pk_bf16_f32 v{40+r}, v{40+r}, v{40+r}")
        E(f"    v_lshlrev_b32 v{40+r}, 16, v{40+r}")
    E("    s_lshl_b32 s22, s21, 2")
    E("    v_mov_b32 v3, s22")
    E("    v_cmp_eq_u32 vcc, 63, v1")
    E("    s_and_saveexec_b64 s[24:25], vcc")
    for r in range(8):
        E(f"    buffer_store_dword v{40+r}, v3, s[16:19], 0 offen offset:{r*4}")
    E("    s_endpgm")

def role_final(L):
    E(f"{L}_fin:")
    E("    s_load_dwordx2 s[44:45], s[0:1], 88")
    E("    s_load_dwordx2 s[46:47], s[0:1], 104")
    E("    s_waitcnt lgkmcnt(0)")
    srd_ws(8, 6, 7, WS_O, 0x400000)
    srd(12, 44, 45, 0x200000)
    srd(16, 46, 47, 0x400000)
    srd_ws(60, 6, 7, WS_AT, 0x400000)
    srd_ws(64, 6, 7, WS_G, 0x2000)
    E("    v_and_b32 v1, 63, v0")
    E("    v_lshrrev_b32 v2, 6, v0")
    E("    s_nop 1")
    E("    v_readfirstlane_b32 s20, v2")
    E("    s_nop 3")
    E("    s_lshr_b32 s21, s2, 4")
    E("    s_and_b32 s22, s2, 15")
    E("    s_lshr_b32 s23, s20, 1")
    E("    s_and_b32 s24, s20, 1")
    E("    v_lshrrev_b32 v3, 4, v1")
    E("    v_and_b32 v4, 15, v1")
    E("    v_lshlrev_b32 v4, 4, v4")
    E("    v_lshl_add_u32 v3, v3, 12, v4")
    E("    s_lshl_b32 s25, s22, 18")
    E("    s_lshl_b32 s26, s21, 8")
    E("    s_add_u32 s25, s25, s26")
    E("    s_lshl_b32 s26, s20, 16")
    E("    s_add_u32 s25, s25, s26")
    E("    s_lshl_b32 s26, s20, 12")
    for i in range(4):
        E(f"    s_add_u32 s27, s26, {73728+i*1024}")
        E("    s_mov_b32 m0, s27")
        E(f"    s_add_u32 s28, s25, {i*4*4096}")
        E("    s_nop 0")
        E("    buffer_load_dwordx4 v3, s[60:63], s28 offen lds")
    E("    v_lshrrev_b32 v3, 3, v1")
    E("    v_and_b32 v4, 7, v1")
    E("    v_lshrrev_b32 v5, 1, v3")
    E("    v_xor_b32 v4, v4, v5")
    E("    v_lshlrev_b32 v4, 4, v4")
    E("    v_lshl_add_u32 v2, v3, 11, v4")
    E("    v_xor_b32 v3, 64, v2")
    E("    v_lshrrev_b32 v5, 3, v1")
    E("    v_and_b32 v4, 7, v1")
    E("    v_lshrrev_b32 v6, 1, v5")
    E("    v_and_b32 v6, 1, v6")
    E("    v_lshlrev_b32 v6, 2, v6")
    E("    v_xor_b32 v4, v4, v6")
    E("    v_lshlrev_b32 v4, 4, v4")
    E("    v_lshl_add_u32 v4, v5, 11, v4")
    E("    s_lshl_b32 s25, s22, 7")
    E("    v_add_u32 v4, s25, v4")
    E("    v_and_b32 v7, 31, v1")
    E("    v_lshrrev_b32 v8, 5, v1")
    E("    v_lshrrev_b32 v9, 1, v7")
    E("    v_and_b32 v9, 7, v9")
    E("    s_lshl_b32 s26, s23, 13")
    for sidx in range(4):
        E(f"    v_add_u32 v10, {2*sidx}, v8")
        E("    v_xor_b32 v10, v10, v9")
        E("    v_lshlrev_b32 v10, 4, v10")
        E("    v_lshl_add_u32 v10, v7, 7, v10")
        E(f"    v_add_u32 v{12+sidx}, s26, v10")
    E("    v_and_b32 v10, 15, v1")
    E("    v_lshrrev_b32 v10, 2, v10")
    E("    v_lshl_add_u32 v11, v8, 3, v10")
    E("    v_lshlrev_b32 v11, 7, v11")
    E("    v_lshrrev_b32 v10, 1, v10")
    E("    v_lshlrev_b32 v10, 6, v10")
    E("    v_lshrrev_b32 v16, 4, v1")
    E("    v_and_b32 v16, 1, v16")
    E("    v_lshlrev_b32 v16, 5, v16")
    E("    v_and_b32 v17, 3, v1")
    E("    v_lshl_add_u32 v16, v17, 3, v16")
    E("    v_mov_b32 v18, v16")
    E("    s_lshl_b32 s26, s24, 6")
    E("    v_add_u32 v16, s26, v16")
    E("    v_xor_b32 v16, v16, v10")
    E("    v_add_u32 v16, v16, v11")
    E("    v_add_u32 v16, 16384, v16")
    E("    s_lshl_b32 s27, s21, 18")
    E("    s_lshl_b32 s28, s20, 16")
    E("    s_add_u32 s27, s27, s28")
    E("    s_lshl_b32 s28, s20, 15")
    E("    s_mov_b32 s29, 0")
    E("    s_mov_b32 s30, 0")
    def dma():
        E("    s_lshl_b32 s31, s29, 7")
        E("    s_add_u32 s31, s31, s27")
        E("    s_lshl_b32 s32, s20, 12")
        E("    s_add_u32 s32, s32, s30")
        for i in range(4):
            E(f"    s_add_u32 s33, s32, {i*1024}")
            E("    s_mov_b32 m0, s33")
            E(f"    s_add_u32 s34, s31, {i*8*2048}")
            E("    s_nop 0")
            E(f"    buffer_load_dwordx4 v{2+(i&1)}, s[8:11], s34 offen lds")
        E("    s_lshl_b32 s31, s29, 17")
        E("    s_add_u32 s31, s31, s28")
        E("    s_lshl_b32 s32, s20, 11")
        E("    s_add_u32 s32, s32, s30")
        E("    s_add_u32 s32, s32, 16384")
        for i in range(2):
            E(f"    s_add_u32 s33, s32, {i*1024}")
            E("    s_mov_b32 m0, s33")
            E(f"    s_add_u32 s34, s31, {i*8*2048}")
            E("    s_nop 0")
            E(f"    buffer_load_dwordx4 v4, s[12:15], s34 offen lds")
        E("    s_add_u32 s29, s29, 1")
        E("    s_add_u32 s30, s30, 24576")
        E("    s_cmp_ge_u32 s30, 73728")
        E("    s_cselect_b32 s30, 0, s30")
    for r in range(32):
        E(f"    v_mov_b32 v{64+r}, 0")
    dma(); dma()
    E("    s_mov_b32 s35, 0")
    E("    s_mov_b32 s36, 0")
    E(f"{L}_fin_loop:")
    E("    s_cmp_lt_u32 s35, 15")
    E(f"    s_cbranch_scc1 {L}_fin_w6")
    E("    s_waitcnt vmcnt(0)")
    E(f"    s_branch {L}_fin_wd")
    E(f"{L}_fin_w6:")
    E("    s_waitcnt vmcnt(6)")
    E(f"{L}_fin_wd:")
    E("    s_barrier")
    E("    s_cmp_lt_u32 s29, 16")
    E(f"    s_cbranch_scc0 {L}_fin_nodma")
    dma()
    E(f"{L}_fin_nodma:")
    for i in range(5):
        E(f"    v_add_u32 v{20+i}, s36, v{12+i}")
    def rd(sx, bb):
        for mt in range(2):
            E(f"    ds_read_b128 v[{28+bb+4*mt}:{31+bb+4*mt}], v{20+sx} offset:{mt*4096}")
        for kq in range(2):
            E(f"    ds_read_b64_tr_b16 v[{36+bb+2*kq}:{37+bb+2*kq}], v24 offset:{sx*16*128+kq*4*128}")
    rd(0, 0)
    for sx in range(4):
        bb = (sx & 1) * 12
        if sx < 3:
            rd(sx+1, 12-bb)
            E("    s_waitcnt lgkmcnt(4)")
        else:
            E("    s_waitcnt lgkmcnt(0)")
        for mt in range(2):
            acc = 64 + mt*16
            E(f"    v_mfma_f32_32x32x16_bf16 v[{acc}:{acc+15}], v[{36+bb}:{39+bb}], v[{28+bb+4*mt}:{31+bb+4*mt}], v[{acc}:{acc+15}]")
    E("    s_add_u32 s36, s36, 24576")
    E("    s_cmp_ge_u32 s36, 73728")
    E("    s_cselect_b32 s36, 0, s36")
    E("    s_add_u32 s35, s35, 1")
    E("    s_cmp_lt_u32 s35, 16")
    E(f"    s_cbranch_scc1 {L}_fin_loop")
    E("    s_lshl_b32 s26, s21, 7")
    E("    s_lshl_b32 s27, s23, 6")
    E("    s_add_u32 s26, s26, s27")
    E("    v_add_u32 v20, s26, v7")
    E("    v_lshlrev_b32 v21, 2, v20")
    E("    buffer_load_dword v22, v21, s[64:67], 0 offen")
    E("    buffer_load_dword v23, v21, s[64:67], 0 offen offset:128")
    E("    v_lshlrev_b32 v20, 11, v20")
    E("    v_lshl_add_u32 v20, v8, 3, v20")
    E("    s_lshl_b32 s26, s22, 7")
    E("    s_lshl_b32 s27, s24, 6")
    E("    s_add_u32 s26, s26, s27")
    E("    v_add_u32 v20, s26, v20")
    E("    v_and_b32 v10, 15, v1")
    E("    v_lshrrev_b32 v10, 2, v10")
    E("    v_lshl_add_u32 v10, v8, 2, v10")
    E("    s_lshl_b32 s26, s24, 5")
    E("    v_add_u32 v10, s26, v10")
    E("    v_lshlrev_b32 v10, 8, v10")
    E("    v_add_u32 v10, v10, v18")
    E("    s_lshl_b32 s26, s23, 7")
    E("    v_add_u32 v10, s26, v10")
    E("    v_add_u32 v10, 73728, v10")
    for mt in range(2):
        for a in range(4):
            E(f"    ds_read_b64_tr_b16 v[{100+(mt*4+a)*2}:{101+(mt*4+a)*2}], v10 offset:{a*8*256+mt*64}")
    E("    s_waitcnt vmcnt(0) lgkmcnt(0)")
    E("    v_sub_f32 v24, 1.0, v22")
    E("    v_sub_f32 v25, 1.0, v23")
    E("    v_cvt_pk_bf16_f32 v24, v24, v25")
    unpack(25, 26, 24)
    for mt in range(2):
        g = 22 + mt; og = 25 + mt
        for a in range(4):
            acc = 64 + mt*16 + 4*a; ab = 100+(mt*4+a)*2
            E(f"    v_cvt_pk_bf16_f32 v40, v{acc}, v{acc+1}")
            E(f"    v_cvt_pk_bf16_f32 v41, v{acc+2}, v{acc+3}")
            unpack(42, 43, 40); unpack(44, 45, 41)
            unpack(46, 47, ab); unpack(48, 49, ab+1)
            for q in range(4):
                E(f"    v_mul_f32 v{42+q}, v{42+q}, v{og}")
                E(f"    v_mul_f32 v{46+q}, v{46+q}, v{g}")
            E("    v_cvt_pk_bf16_f32 v40, v42, v43")
            E("    v_cvt_pk_bf16_f32 v41, v44, v45")
            E("    v_cvt_pk_bf16_f32 v50, v46, v47")
            E("    v_cvt_pk_bf16_f32 v51, v48, v49")
            unpack(42, 43, 40); unpack(44, 45, 41)
            unpack(46, 47, 50); unpack(48, 49, 51)
            for q in range(4):
                E(f"    v_add_f32 v{42+q}, v{42+q}, v{46+q}")
            E(f"    v_cvt_pk_bf16_f32 v{ab}, v42, v43")
            E(f"    v_cvt_pk_bf16_f32 v{ab+1}, v44, v45")
            if mt == 0:
                E(f"    buffer_store_dwordx2 v[{ab}:{ab+1}], v20, s[16:19], 0 offen offset:{a*16}")
            else:
                E(f"    s_mov_b32 s27, {32*2048}")
                E(f"    buffer_store_dwordx2 v[{ab}:{ab+1}], v20, s[16:19], s27 offen offset:{a*16}")
    E("    s_endpgm")

def common_prologue():
    E("    s_load_dwordx2 s[4:5], s[0:1], 0")
    E("    s_load_dwordx2 s[6:7], s[0:1], 120")
    E("    s_waitcnt lgkmcnt(0)")

def build(stage):
    E("; generated by dev/gen.py")
    E("; @launch kernel=k1_kernel grid=(544,1,1) block=(256,1,1) lds=122880")
    E("; @launch kernel=k2_kernel grid=(352,1,1) block=(256,1,1) lds=53248")
    E("; @launch kernel=k3_kernel grid=(256,1,1) block=(256,1,1) lds=90112")
    E('.amdgcn_target "amdgcn-amd-amdhsa--gfx950"')
    kernel_begin("k1_kernel")
    common_prologue()
    E("    s_cmp_lt_u32 s2, 256")
    E("    s_cbranch_scc1 k1_qkv")
    E("    s_sub_u32 s2, s2, 256")
    E("    s_cmp_lt_u32 s2, 256")
    E("    s_cbranch_scc1 k1_kg")
    E("    s_sub_u32 s2, s2, 256")
    E("    s_cmp_lt_u32 s2, 32")
    E("    s_cbranch_scc1 k1_tr")
    E("    s_endpgm")
    role_qkv("k1")
    role_kgen("k1")
    role_transpose("k1")
    kernel_begin("k2_kernel")
    common_prologue()
    E("    s_cmp_lt_u32 s2, 32")
    E("    s_cbranch_scc1 k2_o")
    E("    s_sub_u32 s2, s2, 32")
    E("    s_cmp_lt_u32 s2, 256")
    E("    s_cbranch_scc1 k2_cv")
    E("    s_sub_u32 s2, s2, 256")
    E("    s_cmp_lt_u32 s2, 64")
    E("    s_cbranch_scc1 k2_gt")
    E("    s_endpgm")
    role_o("k2")
    role_conv("k2")
    role_gate("k2")
    kernel_begin("k3_kernel")
    common_prologue()
    E("    s_cmp_lt_u32 s2, 256")
    E("    s_cbranch_scc1 k3_fin")
    E("    s_endpgm")
    role_final("k3")
    kernel_desc("k1_kernel", 160)
    kernel_desc("k2_kernel", 216)
    kernel_desc("k3_kernel", 128)

if __name__ == "__main__":
    build(sys.argv[1] if len(sys.argv) > 1 else "a")
    open(sys.argv[2] if len(sys.argv) > 2 else "cur.s", "w").write("\n".join(out) + "\n")
```

```python
import sys, os

WS_UT  = 0x0000000
WS_KB  = 0x0400000
KB_ROW = 5120
WS_PQ  = 0x2000000
WS_KVP = 0x2400000
WS_ZP  = 0x2800000
WS_O   = 0x2900000
WS_AT  = 0x2D00000
WS_G   = 0x3100000
WS_END = 0x3200000

out = []
def E(s=""):
    out.append(s)

def srd(dst, lo, hi, nbytes):
    E(f"    s_mov_b32 s{dst}, s{lo}")
    E(f"    s_and_b32 s{dst+1}, s{hi}, 0xffff")
    E(f"    s_mov_b32 s{dst+2}, {hex(nbytes)}")
    E(f"    s_mov_b32 s{dst+3}, 0x00020000")

def srd_ws(dst, lo, hi, off, nbytes):
    E(f"    s_add_u32 s{dst}, s{lo}, {hex(off)}")
    E(f"    s_addc_u32 s{dst+1}, s{hi}, 0")
    E(f"    s_and_b32 s{dst+1}, s{dst+1}, 0xffff")
    E(f"    s_mov_b32 s{dst+2}, {hex(nbytes)}")
    E(f"    s_mov_b32 s{dst+3}, 0x00020000")

def kernel_begin(name):
    E(".text")
    E(f".globl {name}")
    E(".p2align 8")
    E(f".type {name},@function")
    E(f"{name}:")

def kernel_desc(name, vgpr, sgpr=102):
    acc = (vgpr + 3) // 4 * 4
    E('.section .rodata,"a"')
    E(".p2align 6")
    E(f".amdhsa_kernel {name}")
    E(f"  .amdhsa_next_free_vgpr {vgpr}")
    E(f"  .amdhsa_next_free_sgpr {sgpr}")
    E(f"  .amdhsa_accum_offset {acc}")
    E("  .amdhsa_group_segment_fixed_size 0")
    E("  .amdhsa_kernarg_size 128")
    E("  .amdhsa_user_sgpr_count 2")
    E("  .amdhsa_user_sgpr_kernarg_segment_ptr 1")
    E("  .amdhsa_system_sgpr_workgroup_id_x 1")
    E(".end_amdhsa_kernel")

LOG2E = 0x3fb8aa3b
INV2PI = 0x3e22f983

def role_transpose(L):
    E(f"{L}_tr:")
    E("    s_and_b32 s26, s2, 7")
    E("    s_lshr_b32 s2, s2, 3")
    srd(8, 4, 5, 0x400000)
    srd_ws(12, 6, 7, WS_UT, 0x400000)
    E("    v_and_b32 v1, 63, v0")
    E("    v_lshrrev_b32 v2, 6, v0")
    E("    s_nop 1")
    E("    v_readfirstlane_b32 s20, v2")
    E("    s_nop 3")
    E("    v_lshrrev_b32 v3, 4, v1")
    E("    v_lshlrev_b32 v3, 11, v3")
    E("    v_and_b32 v4, 15, v1")
    E("    v_lshlrev_b32 v4, 4, v4")
    E("    v_add_u32 v3, v3, v4")
    E("    s_lshl_b32 s21, s2, 17")
    E("    s_lshl_b32 s22, s20, 15")
    E("    s_add_u32 s21, s21, s22")
    E("    s_lshl_b32 s23, s20, 12")
    E("    v_and_b32 v5, 15, v1")
    E("    v_lshrrev_b32 v5, 2, v5")
    E("    v_lshlrev_b32 v5, 8, v5")
    E("    v_and_b32 v6, 3, v1")
    E("    v_lshlrev_b32 v6, 3, v6")
    E("    v_lshrrev_b32 v7, 4, v1")
    E("    v_lshlrev_b32 v7, 5, v7")
    E("    v_add3_u32 v5, v5, v6, v7")
    E("    v_add_u32 v5, s23, v5")
    E("    v_and_b32 v6, 15, v1")
    E("    v_lshrrev_b32 v7, 4, v1")
    E("    v_lshl_add_u32 v6, v7, 4, v6")
    E("    v_lshlrev_b32 v6, 12, v6")
    E("    s_lshl_b32 s24, s2, 7")
    E("    s_lshl_b32 s25, s20, 5")
    E("    s_add_u32 s24, s24, s25")
    E("    v_add_u32 v6, s24, v6")
    E(f"{L}_tr_loop:")
    E("    s_lshl_b32 s27, s26, 8")
    E("    s_add_u32 s27, s27, s21")
    for i in range(4):
        E(f"    s_add_u32 s28, s23, {i*1024}")
        E("    s_mov_b32 m0, s28")
        E(f"    s_add_u32 s29, s27, {i*8192}")
        E("    s_nop 0")
        E("    buffer_load_dwordx4 v3, s[8:11], s29 offen lds")
    E("    s_waitcnt vmcnt(0)")
    E("    s_lshl_b32 s30, s26, 19")
    for p in range(2):
        for q in range(4):
            E(f"    ds_read_b64_tr_b16 v[{10+p*8+2*q}:{11+p*8+2*q}], v5 offset:{q*1024+p*128}")
    E("    s_waitcnt lgkmcnt(0)")
    for p in range(2):
        E(f"    s_add_u32 s31, s30, {p*64*4096}")
        E(f"    buffer_store_dwordx4 v[{10+p*8}:{13+p*8}], v6, s[12:15], s31 offen")
        E(f"    buffer_store_dwordx4 v[{14+p*8}:{17+p*8}], v6, s[12:15], s31 offen offset:16")
    E("    s_waitcnt vmcnt(0)")
    E("    s_endpgm")

def cexp(dre, dim, lreg, tmp, are, aim):
    E(f"    v_mul_f32 v{tmp}, v{are}, v{lreg}")
    E(f"    v_mul_f32 v{tmp+1}, v{aim}, v{lreg}")
    E(f"    v_mul_f32 v{tmp}, s40, v{tmp}")
    E(f"    v_mul_f32 v{tmp+1}, s41, v{tmp+1}")
    E(f"    v_exp_f32 v{tmp}, v{tmp}")
    E(f"    v_fract_f32 v{tmp+1}, v{tmp+1}")
    E(f"    v_cos_f32 v{dre}, v{tmp+1}")
    E(f"    v_sin_f32 v{dim}, v{tmp+1}")
    E(f"    s_nop 0")
    E(f"    v_mul_f32 v{dre}, v{dre}, v{tmp}")
    E(f"    v_mul_f32 v{dim}, v{dim}, v{tmp}")

def csq(dre, dim, sre, sim_, tmp):
    E(f"    v_mul_f32 v{tmp}, v{sim_}, v{sim_}")
    E(f"    v_mul_f32 v{dim}, v{sre}, v{sim_}")
    E(f"    v_fma_f32 v{dre}, v{sre}, v{sre}, -v{tmp}")
    E(f"    v_add_f32 v{dim}, v{dim}, v{dim}")

def cmul(dre, dim, are, aim, bre, bim):
    E(f"    v_mul_f32 v{dre}, v{are}, v{bre}")
    E(f"    v_mul_f32 v{dim}, v{are}, v{bim}")
    E(f"    v_fma_f32 v{dre}, -v{aim}, v{bim}, v{dre}")
    E(f"    v_fma_f32 v{dim}, v{aim}, v{bre}, v{dim}")

KG_LDS_WAVE = 18944
KG_LIN = 12544
def role_kgen(L):
    E(f"{L}_kg:")
    E("    s_load_dwordx4 s[44:47], s[0:1], 8")
    E("    s_load_dwordx4 s[48:51], s[0:1], 24")
    E("    s_load_dwordx4 s[52:55], s[0:1], 40")
    E("    s_load_dwordx2 s[56:57], s[0:1], 56")
    E("    s_waitcnt lgkmcnt(0)")
    srd(60, 44, 45, 0x40000)
    srd(64, 46, 47, 0x40000)
    srd(68, 48, 49, 0x40000)
    srd(72, 50, 51, 0x40000)
    srd(76, 52, 53, 0x40000)
    srd(80, 54, 55, 0x40000)
    srd(84, 56, 57, 0x800)
    srd_ws(12, 6, 7, WS_KB, 1024*KB_ROW)
    E(f"    s_mov_b32 s40, {hex(LOG2E)}")
    E(f"    s_mov_b32 s41, {hex(INV2PI)}")
    E("    v_and_b32 v1, 63, v0")
    E("    v_lshrrev_b32 v2, 6, v0")
    E("    s_nop 1")
    E("    v_readfirstlane_b32 s20, v2")
    E("    s_nop 3")
    E("    s_lshl_b32 s21, s2, 2")
    E("    s_add_u32 s21, s21, s20")
    E(f"    s_mul_i32 s22, s20, {KG_LDS_WAVE}")
    E("    s_lshl_b32 s23, s21, 1")
    E("    v_mov_b32 v3, s23")
    E("    buffer_load_ushort v4, v3, s[84:87], 0 offen")
    E("    v_and_b32 v5, 15, v1")
    E("    v_lshrrev_b32 v6, 4, v1")
    E("    v_cvt_f32_u32 v7, v5")
    E("    v_mul_f32 v8, 16.0, v7")
    E("    v_add_f32 v9, v8, v8")
    E("    v_add_f32 v9, 0x43800000, v9")
    E("    v_lshlrev_b32 v10, 6, v6")
    E("    s_lshl_b32 s23, s21, 8")
    E("    v_add_u32 v10, s23, v10")
    E("    s_waitcnt vmcnt(0)")
    E("    v_lshlrev_b32 v4, 16, v4")
    E("    v_mul_f32 v4, s40, v4")
    E("    v_exp_f32 v4, v4")
    E("    s_nop 0")
    E("    v_cvt_pk_bf16_f32 v4, v4, v4")
    E("    v_lshlrev_b32 v4, 16, v4")
    for r in range(16):
        E(f"    v_mov_b32 v{64+r}, 0")
    for i, s in enumerate((60, 64, 68, 72, 76, 80)):
        E(f"    buffer_load_ushort v{12+i}, v10, s[{s}:{s+3}], 0 offen")
    E("    s_mov_b32 s26, 0")
    E(f"{L}_kg_loop:")
    E("    s_waitcnt vmcnt(0)")
    for i in range(6):
        E(f"    v_lshlrev_b32 v{18+i}, 16, v{12+i}")
    E("    v_add_u32 v10, 2, v10")
    E("    s_cmp_lt_u32 s26, 31")
    E(f"    s_cbranch_scc0 {L}_kg_nopf")
    for i, s in enumerate((60, 64, 68, 72, 76, 80)):
        E(f"    buffer_load_ushort v{12+i}, v10, s[{s}:{s+3}], 0 offen")
    E(f"{L}_kg_nopf:")
    E("    v_mul_f32 v18, v4, v18")
    E("    v_mul_f32 v19, v4, v19")
    E("    v_mul_f32 v20, v4, v20")
    E("    v_mul_f32 v21, v4, v21")
    cmul(24, 25, 22, 23, 20, 21)
    cexp(26, 27, 7, 60, 18, 19)
    cexp(34, 35, 8, 60, 18, 19)
    cexp(36, 37, 9, 60, 18, 19)
    csq(28, 29, 26, 27, 60)
    csq(38, 39, 36, 37, 61)
    csq(30, 31, 28, 29, 60)
    csq(40, 41, 38, 39, 61)
    csq(32, 33, 30, 31, 60)
    for s in range(4):
        cmul(42+2*s, 43+2*s, 24, 25, 34+2*s, 35+2*s)
    for s in range(4):
        E(f"    v_xor_b32 v{27+2*s}, 0x80000000, v{27+2*s}")
    E("    s_nop 1")
    for s in range(4):
        E(f"    v_mfma_f32_16x16x4_f32 v[{64+4*s}:{67+4*s}], v{42+2*s}, v{26+2*s}, v[{64+4*s}:{67+4*s}]")
    for s in range(4):
        E(f"    v_mfma_f32_16x16x4_f32 v[{64+4*s}:{67+4*s}], v{43+2*s}, v{27+2*s}, v[{64+4*s}:{67+4*s}]")
    E("    s_add_u32 s26, s26, 1")
    E("    s_cmp_lt_u32 s26, 32")
    E(f"    s_cbranch_scc1 {L}_kg_loop")
    E("    s_nop 7")
    E("    s_nop 7")
    E("    v_lshlrev_b32 v11, 6, v6")
    E("    v_add_u32 v11, v11, v5")
    for s in range(4):
        base = [0, 256, 512, 1024][s]
        E(f"    v_lshlrev_b32 v12, {s+2}, v11")
        E(f"    v_add_u32 v12, s22, v12")
        for r in range(4):
            E(f"    ds_write_b32 v12, v{64+4*s+r} offset:{base*4 + r*16*(1<<s)*4}")
    E("    s_waitcnt lgkmcnt(0)")
    E(f"    s_mul_i32 s23, s21, {KB_ROW}")
    E("    v_lshlrev_b32 v13, 4, v1")
    E("    v_add_u32 v13, s23, v13")
    E("    v_lshlrev_b32 v14, 3, v1")
    cp = 0
    E("    v_lshlrev_b32 v15, 4, v1")
    E("    v_add_u32 v15, s22, v15")
    if True:
      for it in range(5):
        for j in range(8):
            E(f"    v_sub_u32 v{20+j}, {2047 - it*512 - j - cp}, v14")
            E(f"    v_max_i32 v{50+j}, 0, v{20+j}")
            E(f"    v_cvt_f32_u32 v{50+j}, v{50+j}")
            E(f"    v_cvt_pk_bf16_f32 v{50+j}, v{50+j}, v{50+j}")
            E(f"    v_lshlrev_b32 v{50+j}, 16, v{50+j}")
            E(f"    v_cvt_u32_f32 v{50+j}, v{50+j}")
            E(f"    v_lshlrev_b32 v{50+j}, 2, v{50+j}")
            E(f"    v_add_u32 v{50+j}, s22, v{50+j}")
        for j in range(8):
            E(f"    ds_read_b32 v{30+j}, v{50+j}")
        E("    s_waitcnt lgkmcnt(0)")
        for j in range(8):
            E(f"    v_cmp_gt_i32 vcc, 0, v{20+j}")
            E("    s_nop 1")
            E(f"    v_cndmask_b32 v{30+j}, v{30+j}, 0, vcc")
        for j in range(4):
            E(f"    v_cvt_pk_bf16_f32 v{40+j}, v{30+2*j}, v{31+2*j}")
        E(f"    s_mov_b32 s23, {cp*5120+it*1024}")
        E(f"    buffer_store_dwordx4 v[40:43], v13, s[12:15], s23 offen")
        E("    s_nop 1")
    E("    s_endpgm")

def unpack(d0, d1, src):
    E(f"    v_lshlrev_b32 v{d0}, 16, v{src}")
    E(f"    v_and_b32 v{d1}, 0xffff0000, v{src}")

def phi_pair(dst, a0, a1, t):
    E(f"    v_cvt_pk_bf16_f32 v{t}, v{a0}, v{a1}")
    unpack(t+1, t+2, t)
    E(f"    v_add_f32 v{t+3}, 1.0, v{t+1}")
    E(f"    v_add_f32 v{t+4}, 1.0, v{t+2}")
    E(f"    v_mul_f32 v{t+5}, s40, v{t+1}")
    E(f"    v_mul_f32 v{t+6}, s40, v{t+2}")
    E(f"    v_exp_f32 v{t+5}, v{t+5}")
    E(f"    v_exp_f32 v{t+6}, v{t+6}")
    E(f"    v_cvt_pk_bf16_f32 v{t+3}, v{t+3}, v{t+4}")
    E(f"    v_cmp_lt_f32 vcc, 0, v{t+1}")
    E(f"    v_cvt_pk_bf16_f32 v{t+5}, v{t+5}, v{t+6}")
    unpack(t+4, t+6, t+3)
    E(f"    v_lshlrev_b32 v{t+3}, 16, v{t+5}")
    E(f"    v_and_b32 v{t+5}, 0xffff0000, v{t+5}")
    E(f"    v_cndmask_b32 v{t+3}, v{t+3}, v{t+4}, vcc")
    E(f"    v_cmp_lt_f32 vcc, 0, v{t+2}")
    E(f"    v_add_f32 v{t+3}, s42, v{t+3}")
    E(f"    s_nop 0")
    E(f"    v_cndmask_b32 v{t+5}, v{t+5}, v{t+6}, vcc")
    E(f"    v_add_f32 v{t+5}, s42, v{t+5}")
    E(f"    v_cvt_pk_bf16_f32 v{dst}, v{t+3}, v{t+5}")

EPS6 = 0x358637bd

def role_qkv(L):
    E(f"{L}_qkv:")
    E("    s_load_dwordx2 s[44:45], s[0:1], 80")
    E("    s_waitcnt lgkmcnt(0)")
    srd(8, 4, 5, 0x400000)
    srd(12, 44, 45, 0x600000)
    srd_ws(16, 6, 7, WS_PQ, 0x400000)
    srd_ws(60, 6, 7, WS_KVP, 0x400000)
    srd_ws(64, 6, 7, WS_ZP, 0x40000)
    E(f"    s_mov_b32 s40, {hex(LOG2E)}")
    E(f"    s_mov_b32 s42, {hex(EPS6)}")
    E("    v_and_b32 v1, 63, v0")
    E("    v_lshrrev_b32 v2, 6, v0")
    E("    s_nop 1")
    E("    v_readfirstlane_b32 s20, v2")
    E("    s_nop 3")
    E("    s_lshr_b32 s21, s2, 4")
    E("    s_and_b32 s22, s2, 15")
    E("    s_lshr_b32 s23, s20, 1")
    E("    s_and_b32 s24, s20, 1")
    E("    v_lshrrev_b32 v3, 3, v1")
    E("    v_and_b32 v4, 7, v1")
    E("    v_lshrrev_b32 v5, 1, v3")
    E("    v_xor_b32 v4, v4, v5")
    E("    v_lshlrev_b32 v4, 4, v4")
    E("    v_lshl_add_u32 v2, v3, 11, v4")
    E("    v_xor_b32 v3, 64, v2")
    E("    s_lshl_b32 s25, s22, 7")
    for c in range(3):
        E(f"    v_add_u32 v7, {64*c}, v1")
        E("    v_mul_u32_u24 v8, 171, v7")
        E("    v_lshrrev_b32 v8, 12, v8")
        E("    v_mul_u32_u24 v9, 24, v8")
        E("    v_sub_u32 v9, v7, v9")
        E("    v_lshrrev_b32 v10, 1, v8")
        E("    v_and_b32 v10, 1, v10")
        E("    v_lshlrev_b32 v10, 2, v10")
        E("    v_xor_b32 v9, v9, v10")
        E("    v_lshrrev_b32 v10, 3, v9")
        E("    v_and_b32 v9, 7, v9")
        E("    v_lshlrev_b32 v9, 4, v9")
        E("    v_lshl_add_u32 v9, v10, 11, v9")
        E("    v_mul_u32_u24 v8, 6144, v8")
        E(f"    v_add3_u32 v{4+c}, v8, v9, s25")
    E("    v_and_b32 v7, 31, v1")
    E("    v_lshrrev_b32 v8, 5, v1")
    E("    v_lshrrev_b32 v9, 1, v7")
    E("    v_and_b32 v9, 7, v9")
    E("    s_lshl_b32 s26, s23, 13")
    for sidx in range(4):
        E(f"    v_add_u32 v10, {2*sidx}, v8")
        E("    v_xor_b32 v10, v10, v9")
        E("    v_lshlrev_b32 v10, 4, v10")
        E("    v_lshl_add_u32 v10, v7, 7, v10")
        E(f"    v_add_u32 v{12+sidx}, s26, v10")
    E("    v_and_b32 v10, 15, v1")
    E("    v_lshrrev_b32 v10, 2, v10")
    E("    v_lshl_add_u32 v11, v8, 3, v10")
    E("    v_mul_u32_u24 v11, 384, v11")
    E("    v_lshrrev_b32 v10, 1, v10")
    E("    v_lshlrev_b32 v10, 6, v10")
    E("    v_lshrrev_b32 v16, 4, v1")
    E("    v_and_b32 v16, 1, v16")
    E("    v_lshlrev_b32 v16, 5, v16")
    E("    v_and_b32 v17, 3, v1")
    E("    v_lshl_add_u32 v16, v17, 3, v16")
    E("    s_lshl_b32 s26, s24, 6")
    E("    v_add_u32 v16, s26, v16")
    E("    v_xor_b32 v16, v16, v10")
    E("    v_add_u32 v16, v16, v11")
    E("    v_add_u32 v16, 16384, v16")
    E("    s_lshl_b32 s27, s21, 18")
    E("    s_lshl_b32 s28, s20, 16")
    E("    s_add_u32 s27, s27, s28")
    E("    s_mul_i32 s28, s20, 2*8*6144")
    E("    s_mov_b32 s29, 0")
    E("    s_mov_b32 s30, 0")
    def dma():
        E("    s_lshl_b32 s31, s29, 7")
        E("    s_add_u32 s31, s31, s27")
        E("    s_lshl_b32 s32, s20, 12")
        E("    s_add_u32 s32, s32, s30")
        for i in range(4):
            E(f"    s_add_u32 s33, s32, {i*1024}")
            E("    s_mov_b32 m0, s33")
            E(f"    s_add_u32 s34, s31, {i*8*2048}")
            E("    s_nop 0")
            E(f"    buffer_load_dwordx4 v{2+(i&1)}, s[8:11], s34 offen lds")
        E("    s_mul_i32 s31, s29, 64*6144")
        E("    s_add_u32 s31, s31, s28")
        E("    s_mul_i32 s32, s20, 6144")
        E("    s_add_u32 s32, s32, s30")
        E("    s_add_u32 s32, s32, 16384")
        for i in range(6):
            E(f"    s_add_u32 s33, s32, {i*1024}")
            E("    s_mov_b32 m0, s33")
            E(f"    s_add_u32 s34, s31, {(i//3)*8*6144}")
            E("    s_nop 0")
            E(f"    buffer_load_dwordx4 v{4+(i%3)}, s[12:15], s34 offen lds")
        E("    s_add_u32 s29, s29, 1")
        E("    s_add_u32 s30, s30, 40960")
        E("    s_cmp_ge_u32 s30, 81920")
        E("    s_cselect_b32 s30, 0, s30")
    for r in range(96):
        E(f"    v_mov_b32 v{64+r}, 0")
    dma()
    E("    s_mov_b32 s35, 0")
    E("    s_mov_b32 s36, 0")
    E(f"{L}_qkv_loop:")
    E("    s_waitcnt vmcnt(0)")
    E("    s_barrier")
    E("    s_cmp_lt_u32 s29, 16")
    E(f"    s_cbranch_scc0 {L}_qkv_nodma")
    dma()
    E(f"{L}_qkv_nodma:")
    for i in range(5):
        E(f"    v_add_u32 v{17+i}, s36, v{12+i}")
    def rd(sx, bb):
        for mt in range(2):
            E(f"    ds_read_b128 v[{24+bb+4*mt}:{27+bb+4*mt}], v{17+sx} offset:{mt*4096}")
        for p in range(3):
            for kq in range(2):
                E(f"    ds_read_b64_tr_b16 v[{32+bb+4*p+2*kq}:{33+bb+4*p+2*kq}], v21 offset:{sx*16*384+kq*4*384+p*128}")
    rd(0, 0)
    for sx in range(4):
        bb = (sx & 1) * 20
        if sx < 3:
            rd(sx+1, 20-bb)
            E("    s_waitcnt lgkmcnt(8)")
        else:
            E("    s_waitcnt lgkmcnt(0)")
        for mt in range(2):
            A = f"v[{24+bb+4*mt}:{27+bb+4*mt}]"
            for p in range(3):
                Bf = f"v[{32+bb+4*p}:{35+bb+4*p}]"
                acc = 64 + (mt*3+p)*16
                if p == 0:
                    E(f"    v_mfma_f32_32x32x16_bf16 v[{acc}:{acc+15}], {Bf}, {A}, v[{acc}:{acc+15}]")
                else:
                    E(f"    v_mfma_f32_32x32x16_bf16 v[{acc}:{acc+15}], {A}, {Bf}, v[{acc}:{acc+15}]")
    E("    s_add_u32 s36, s36, 40960")
    E("    s_cmp_ge_u32 s36, 81920")
    E("    s_cselect_b32 s36, 0, s36")
    E("    s_add_u32 s35, s35, 1")
    E("    s_cmp_lt_u32 s35, 16")
    E(f"    s_cbranch_scc1 {L}_qkv_loop")
    E("    s_nop 7")
    E("    s_nop 7")
    E("    s_lshl_b32 s26, s21, 7")
    E("    s_lshl_b32 s27, s23, 6")
    E("    s_add_u32 s26, s26, s27")
    E("    v_add_u32 v20, s26, v7")
    E("    v_lshlrev_b32 v20, 11, v20")
    E("    v_lshl_add_u32 v20, v8, 3, v20")
    E("    s_lshl_b32 s26, s22, 7")
    E("    s_lshl_b32 s27, s24, 6")
    E("    s_add_u32 s26, s26, s27")
    E("    v_add_u32 v20, s26, v20")
    for mt in range(2):
        acc = 64 + (mt*3)*16
        for a in range(4):
            phi_pair(22, acc+4*a, acc+4*a+1, 40)
            phi_pair(23, acc+4*a+2, acc+4*a+3, 40)
            E(f"    buffer_store_dwordx2 v[22:23], v20, s[16:19], 0 offen offset:{mt*32*2048+a*16}" if mt*32*2048+a*16 < 4096 else
              f"    s_mov_b32 s27, {mt*32*2048}\n    buffer_store_dwordx2 v[22:23], v20, s[16:19], s27 offen offset:{a*16}")
            E("    s_nop 1")
    E("    v_mov_b32 v21, 0")
    for r in range(16):
        E(f"    v_mov_b32 v{48+r}, 0")
    for mt in range(2):
        kacc = 64 + (mt*3+1)*16
        vacc = 64 + (mt*3+2)*16
        for hh in range(2):
            for j in range(4):
                phi_pair(24+j, kacc+8*hh+2*j, kacc+8*hh+2*j+1, 40)
                unpack(22, 23, 24+j)
                E("    v_add_f32 v21, v21, v22")
                E("    v_add_f32 v21, v21, v23")
                E(f"    v_cvt_pk_bf16_f32 v{28+j}, v{vacc+8*hh+2*j}, v{vacc+8*hh+2*j+1}")
            E("    s_nop 1")
            E("    v_mfma_f32_32x32x16_bf16 v[48:63], v[24:27], v[28:31], v[48:63]")
            E("    s_nop 1")
    E("    s_nop 7")
    E("    s_nop 3")
    E("    s_barrier")
    E("    v_lshlrev_b32 v22, 2, v1")
    E("    s_lshl_b32 s26, s24, 13")
    E("    v_add_u32 v22, s26, v22")
    E("    s_cmp_eq_u32 s23, 0")
    E(f"    s_cbranch_scc1 {L}_qkv_red0")
    for r in range(16):
        E(f"    ds_write_b32 v22, v{48+r} offset:{r*256}")
    E("    ds_write_b32 v22, v21 offset:4096")
    E("    s_waitcnt lgkmcnt(0)")
    E("    s_barrier")
    E("    s_endpgm")
    E(f"{L}_qkv_red0:")
    E("    s_barrier")
    for r in range(16):
        E(f"    ds_read_b32 v{24+r}, v22 offset:{r*256}")
    E("    ds_read_b32 v23, v22 offset:4096")
    E("    s_waitcnt lgkmcnt(0)")
    for r in range(16):
        E(f"    v_add_f32 v{48+r}, v{48+r}, v{24+r}")
    E("    v_add_f32 v21, v21, v23")
    E("    s_mov_b32 s26, s21")
    E("    s_lshl_b32 s27, s22, 1")
    E("    s_add_u32 s27, s27, s24")
    E("    s_lshl_b32 s28, s26, 5")
    E("    s_add_u32 s28, s28, s27")
    E("    s_lshl_b32 s28, s28, 12")
    E("    v_lshlrev_b32 v22, 2, v7")
    E("    v_lshl_add_u32 v22, v8, 9, v22")
    E("    v_add_u32 v22, s28, v22")
    for a in range(4):
        for b in range(4):
            E(f"    buffer_store_dword v{48+4*a+b}, v22, s[60:63], 0 offen offset:{(8*a+b)*128}")
    E("    s_lshl_b32 s28, s26, 13")
    E("    s_lshl_b32 s29, s27, 7")
    E("    s_add_u32 s28, s28, s29")
    E("    v_lshlrev_b32 v22, 2, v7")
    E("    v_lshl_add_u32 v22, v8, 12, v22")
    E("    v_add_u32 v22, s28, v22")
    E("    buffer_store_dword v21, v22, s[64:67], 0 offen")
    E("    s_endpgm")

CV_LDS_WAVE = 30976
KS = 5184
ZB = 20736
O_LDS = 123904
def role_k2(L):
    E(f"{L}_main:")
    stamp(0)
    E("    s_load_dwordx2 s[44:45], s[0:1], 64")
    E("    s_load_dwordx2 s[46:47], s[0:1], 96")
    E("    s_waitcnt lgkmcnt(0)")
    srd(60, 44, 45, 0x800)
    srd_ws(8, 6, 7, WS_KB, 1024*KB_ROW)
    srd_ws(12, 6, 7, WS_UT, 0x400000)
    srd_ws(16, 6, 7, WS_AT, 0x400000)
    srd_ws(64, 6, 7, WS_KVP, 0x400000)
    srd_ws(68, 6, 7, WS_ZP, 0x40000)
    srd_ws(72, 6, 7, WS_PQ, 0x400000)
    srd_ws(76, 6, 7, WS_O, 0x400000)
    srd(80, 4, 5, 0x400000)
    srd(84, 46, 47, 0x800)
    srd_ws(88, 6, 7, WS_G, 0x2000)
    E(f"    s_mov_b32 s40, {hex(LOG2E)}")
    E(f"    s_mov_b32 s42, {hex(EPS6)}")
    E("    v_and_b32 v1, 63, v0")
    E("    v_lshrrev_b32 v2, 6, v0")
    E("    s_nop 1")
    E("    v_readfirstlane_b32 s20, v2")
    E("    s_nop 3")
    E("    s_lshl_b32 s21, s2, 2")
    E("    s_add_u32 s21, s21, s20")
    E(f"    s_mul_i32 s22, s20, {CV_LDS_WAVE}")
    E("    s_lshr_b32 s36, s2, 3")
    E("    s_and_b32 s37, s2, 7")
    E("    v_lshlrev_b32 v3, 4, v1")
    E("    v_and_b32 v6, 31, v1")
    E("    v_lshrrev_b32 v7, 5, v1")
    E("    v_lshlrev_b32 v5, 2, v6")
    E(f"    s_mul_i32 s23, s21, {KB_ROW}")
    E("    s_lshl_b32 s25, s21, 12")
    E("    s_mov_b32 s24, s22")
    E("    v_mov_b32 v12, v1")
    E("    s_mov_b32 s26, 0")
    E(f"{L}_dma:")
    E("    s_mov_b32 m0, s24")
    E("    v_mul_u32_u24 v13, 205, v12")
    E("    v_lshrrev_b32 v13, 10, v13")
    E("    buffer_load_dwordx4 v3, s[8:11], s23 offen lds")
    E("    v_mul_u32_u24 v14, 5, v13")
    E("    v_sub_u32 v14, v12, v14")
    E("    v_min_u32 v14, 3, v14")
    E("    v_lshlrev_b32 v14, 4, v14")
    E("    v_lshl_add_u32 v14, v13, 6, v14")
    E(f"    s_add_u32 s27, s24, {ZB+5120}")
    E("    s_mov_b32 m0, s27")
    E("    v_add_u32 v12, 64, v12")
    E("    buffer_load_dwordx4 v14, s[12:15], s25 offen lds")
    E("    s_add_u32 s24, s24, 1024")
    E("    s_add_u32 s23, s23, 1024")
    E("    s_add_u32 s26, s26, 1")
    E("    s_cmp_lt_u32 s26, 5")
    E(f"    s_cbranch_scc1 {L}_dma")
    E("    s_lshl_b32 s26, s21, 1")
    E("    v_mov_b32 v4, s26")
    E("    buffer_load_ushort v4, v4, s[60:63], 0 offen")
    E("    s_cmp_ge_u32 s37, 4")
    E(f"    s_cbranch_scc1 {L}_noo1")
    E("    s_lshl_b32 s23, s36, 12")
    E("    s_lshl_b32 s24, s20, 10")
    E("    s_add_u32 s23, s23, s24")
    for pp in range(16):
        E(f"    buffer_load_dwordx4 v[{128+pp*4}:{131+pp*4}], v3, s[64:67], s23 offen")
        E(f"    s_add_u32 s23, s23, {32*4096}")
    E("    v_lshl_add_u32 v12, v7, 16, v5")
    E("    s_lshl_b32 s23, s36, 7")
    for i in range(16):
        E(f"    buffer_load_dword v{192+i}, v12, s[68:71], s23 offen")
        E(f"    s_add_u32 s23, s23, 4096")
    E("    s_lshl_b32 s23, s20, 7")
    E("    s_lshl_b32 s24, s37, 9")
    E("    s_add_u32 s23, s23, s24")
    E("    v_add_u32 v10, s23, v6")
    E("    v_lshlrev_b32 v10, 11, v10")
    E("    s_lshl_b32 s23, s36, 6")
    E("    v_add_u32 v10, s23, v10")
    E("    v_lshl_add_u32 v11, v7, 4, v10")
    E("    v_lshl_add_u32 v15, v7, 3, v10")
    for tl in range(4):
        E(f"    s_mov_b32 s38, {tl*0x10000}")
        E(f"    buffer_load_dwordx4 v[{208+8*tl}:{211+8*tl}], v11, s[72:75], s38 offen")
        E(f"    buffer_load_dwordx4 v[{212+8*tl}:{215+8*tl}], v11, s[72:75], s38 offen offset:32")
    E(f"{L}_noo1:")
    E("    buffer_load_dwordx4 v[24:27], v3, s[84:87], 0 offen")
    E("    buffer_load_dwordx4 v[28:31], v3, s[84:87], 0 offen offset:1024")
    E("    s_lshl_b32 s39, s21, 1")
    E("    s_lshl_b32 s23, s39, 11")
    E("    buffer_load_dwordx4 v[240:243], v3, s[80:83], s23 offen")
    E("    buffer_load_dwordx4 v[244:247], v3, s[80:83], s23 offen offset:1024")
    E("    buffer_load_dwordx4 v[248:251], v3, s[80:83], s23 offen offset:2048")
    E("    buffer_load_dwordx4 v[252:255], v3, s[80:83], s23 offen offset:3072")
    for j in range(4):
        E(f"    v_mov_b32 v{16+j}, 0")
    E(f"    v_add_u32 v12, s22, v3")
    for i in range(5):
        E(f"    ds_write_b128 v12, v[16:19] offset:{ZB+i*1024}")
    stamp(1)
    E("    s_cmp_ge_u32 s37, 4")
    E(f"    s_cbranch_scc1 {L}_w6")
    E("    s_waitcnt vmcnt(46)")
    E(f"    s_branch {L}_wd")
    E(f"{L}_w6:")
    E("    s_waitcnt vmcnt(6)")
    E(f"{L}_wd:")
    stamp(2)
    E("    v_add_u32 v13, 2, v12")
    E(f"    v_add_u32 v14, {KS}, v12")
    E("    s_mov_b32 s26, 0")
    E(f"{L}_shf:")
    for it in range(5):
        E(f"    ds_read_b128 v[{64+4*it}:{67+4*it}], v13 offset:{it*1024}")
    E("    s_waitcnt lgkmcnt(0)")
    for it in range(5):
        E(f"    ds_write_b128 v14, v[{64+4*it}:{67+4*it}] offset:{it*1024}")
    E("    v_add_u32 v13, 2, v13")
    E(f"    v_add_u32 v14, {KS}, v14")
    E("    s_add_u32 s26, s26, 1")
    E("    s_cmp_lt_u32 s26, 3")
    E(f"    s_cbranch_scc1 {L}_shf")
    E("    s_waitcnt lgkmcnt(0)")
    stamp(4)
    E("    v_lshlrev_b32 v8, 3, v7")
    E("    v_sub_u32 v8, v8, v6")
    E("    v_add_u32 v8, 31, v8")
    E("    v_and_b32 v12, 3, v8")
    E("    v_sub_u32 v8, v8, v12")
    E("    v_lshlrev_b32 v8, 1, v8")
    E(f"    v_mul_u32_u24 v12, {KS}, v12")
    E("    v_add_u32 v8, v8, v12")
    E("    v_add_u32 v8, s22, v8")
    E("    v_add_u32 v9, 1, v6")
    E("    v_mul_u32_u24 v9, 80, v9")
    E("    v_lshl_add_u32 v9, v7, 4, v9")
    E(f"    v_add_u32 v9, {ZB}, v9")
    E("    v_add_u32 v9, s22, v9")
    E(f"    v_add_u32 v8, {2*(992-64)}, v8")
    E(f"    v_add_u32 v9, {(63-1-2)*80}, v9")
    for r in range(32):
        E(f"    v_mov_b32 v{32+r}, 0")
    def fr(b, i): return 64 + b*32 + i*4
    def reads(dk, b):
        for s in range(2):
            o = 2*(1024 + 64 - 32*dk + 16*s)
            E(f"    ds_read_b64 v[{fr(b,s)}:{fr(b,s)+1}], v8 offset:{o}")
            E(f"    ds_read_b64 v[{fr(b,s)+2}:{fr(b,s)+3}], v8 offset:{o+8}")
        for s in range(2):
            o = 2*(64 - 32*dk + 16*s)
            E(f"    ds_read_b64 v[{fr(b,2+s)}:{fr(b,2+s)+1}], v8 offset:{o}")
            E(f"    ds_read_b64 v[{fr(b,2+s)+2}:{fr(b,2+s)+3}], v8 offset:{o+8}")
        for j in range(2):
            for s in range(2):
                E(f"    ds_read_b128 v[{fr(b,4+2*j+s)}:{fr(b,4+2*j+s)+3}], v9 offset:{(32*j+3-dk)*80+32*s}")
    def mf(b):
        for s in range(2):
            E(f"    v_mfma_f32_32x32x16_bf16 v[32:47], v[{fr(b,s)}:{fr(b,s)+3}], v[{fr(b,4+s)}:{fr(b,4+s)+3}], v[32:47]")
            E(f"    v_mfma_f32_32x32x16_bf16 v[48:63], v[{fr(b,s)}:{fr(b,s)+3}], v[{fr(b,6+s)}:{fr(b,6+s)+3}], v[48:63]")
            E(f"    v_mfma_f32_32x32x16_bf16 v[48:63], v[{fr(b,2+s)}:{fr(b,2+s)+3}], v[{fr(b,4+s)}:{fr(b,4+s)+3}], v[48:63]")
    reads(0, 0)
    E("    s_mov_b32 s26, 0")
    E(f"{L}_conv:")
    reads(1, 1)
    E("    s_waitcnt lgkmcnt(12)")
    mf(0)
    reads(2, 0)
    E("    s_waitcnt lgkmcnt(12)")
    mf(1)
    E("    v_subrev_u32 v8, 128, v8")
    E("    v_subrev_u32 v9, 160, v9")
    E("    s_add_u32 s26, s26, 1")
    E("    s_cmp_lt_u32 s26, 16")
    E(f"    s_cbranch_scc1 {L}_conv")
    E("    s_waitcnt lgkmcnt(0)")
    stamp(5)
    E("    v_lshlrev_b32 v4, 16, v4")
    E("    v_lshlrev_b32 v10, 6, v6")
    E("    v_lshl_add_u32 v10, v7, 3, v10")
    E("    v_mul_u32_u24 v11, 80, v6")
    E("    v_lshl_add_u32 v11, v7, 3, v11")
    E("    v_add_u32 v11, s22, v11")
    E("    s_lshl_b32 s23, s21, 12")
    E("    v_add_u32 v10, s23, v10")
    for j in range(2):
        for a in range(4):
            E(f"    ds_read_b64 v[{64+(j*4+a)*2}:{65+(j*4+a)*2}], v11 offset:{ZB+5120+j*32*80+a*16}")
    E("    s_nop 7")
    E("    s_waitcnt lgkmcnt(0)")
    E("    s_mov_b32 s26, 0")
    E(f"{L}_cep:")
    unpack(100, 101, 64); unpack(102, 103, 65)
    for q in range(4):
        E(f"    v_mul_f32 v{100+q}, v{100+q}, v4")
    E("    v_cvt_pk_bf16_f32 v104, v100, v101")
    E("    v_cvt_pk_bf16_f32 v105, v102, v103")
    E("    v_cvt_pk_bf16_f32 v106, v32, v33")
    E("    v_cvt_pk_bf16_f32 v107, v34, v35")
    unpack(100, 101, 104); unpack(102, 103, 105); unpack(108, 109, 106); unpack(110, 111, 107)
    for q in range(4):
        E(f"    v_add_f32 v{100+q}, v{100+q}, v{108+q}")
    E("    v_cvt_pk_bf16_f32 v104, v100, v101")
    E("    v_cvt_pk_bf16_f32 v105, v102, v103")
    E("    buffer_store_dwordx2 v[104:105], v10, s[16:19], 0 offen")
    for i in range(28):
        E(f"    v_mov_b32 v{32+i}, v{36+i}")
    for i in range(14):
        E(f"    v_mov_b32 v{64+i}, v{66+i}")
    E("    s_add_u32 s26, s26, 1")
    E("    s_cmp_eq_u32 s26, 4")
    E("    s_cselect_b32 s27, 2048-48, 16")
    E("    v_add_u32 v10, s27, v10")
    E("    s_cmp_lt_u32 s26, 8")
    E(f"    s_cbranch_scc1 {L}_cep")
    E("    s_waitcnt vmcnt(0)")
    for i in range(8):
        unpack(64+2*i, 65+2*i, 24+i)
    E("    s_mov_b32 s26, 0")
    E("    s_lshl_b32 s23, s39, 2")
    E("    v_mov_b32 v42, s23")
    E(f"{L}_gate:")
    E("    v_mov_b32 v40, 0")
    for i in range(8):
        unpack(32, 33, 240+i)
        E(f"    v_mul_f32 v32, v32, v{64+2*i}")
        E(f"    v_mul_f32 v33, v33, v{65+2*i}")
        E("    v_cvt_pk_bf16_f32 v32, v32, v33")
        unpack(33, 34, 32)
        E(f"    v_add_f32 v40, v40, v33")
        E(f"    v_add_f32 v40, v40, v34")
    for mod in ("row_shr:1", "row_shr:2", "row_shr:4", "row_shr:8", "row_bcast:15 row_mask:0xa", "row_bcast:31 row_mask:0xc"):
        E("    s_nop 1")
        E(f"    v_add_f32_dpp v40, v40, v40 {mod}")
    E("    s_nop 1")
    E("    v_cvt_pk_bf16_f32 v40, v40, v40")
    E("    v_lshlrev_b32 v40, 16, v40")
    E("    v_mul_f32 v40, s40, v40")
    E("    v_exp_f32 v40, -v40")
    E("    s_nop 0")
    E("    v_add_f32 v40, 1.0, v40")
    E("    v_rcp_f32 v40, v40")
    E("    s_nop 0")
    E("    v_cvt_pk_bf16_f32 v40, v40, v40")
    E("    v_lshlrev_b32 v40, 16, v40")
    E("    v_cmp_eq_u32 vcc, 63, v1")
    E("    s_and_saveexec_b64 s[24:25], vcc")
    E("    buffer_store_dword v40, v42, s[88:91], 0 offen")
    E("    s_mov_b64 exec, s[24:25]")
    E("    v_add_u32 v42, 4, v42")
    for i in range(8):
        E(f"    v_mov_b32 v{240+i}, v{248+i}")
    E("    s_add_u32 s26, s26, 1")
    E("    s_cmp_lt_u32 s26, 2")
    E(f"    s_cbranch_scc1 {L}_gate")
    stamp(3)
    E("    s_cmp_ge_u32 s37, 4")
    E(f"    s_cbranch_scc1 {L}_noo2")
    for pp in range(1, 16):
        for r in range(4):
            E(f"    v_add_f32 v{128+r}, v{128+r}, v{128+pp*4+r}")
    for i in range(1, 16):
        E(f"    v_add_f32 v192, v192, v{192+i}")
    E("    s_lshl_b32 s23, s20, 10")
    E(f"    s_add_u32 s23, s23, {O_LDS}")
    E("    v_add_u32 v12, s23, v3")
    E("    ds_write_b128 v12, v[128:131]")
    E("    v_lshlrev_b32 v12, 2, v1")
    E(f"    v_add_u32 v12, {O_LDS}, v12")
    E("    ds_write_b32 v12, v192 offset:4096")
    E("    s_waitcnt lgkmcnt(0)")
    E("    s_barrier")
    E("    v_lshl_add_u32 v12, v7, 10, v5")
    E(f"    v_add_u32 v12, {O_LDS}, v12")
    E("    v_lshlrev_b32 v13, 5, v7")
    E(f"    v_add_u32 v13, {O_LDS}, v13")
    for q in range(16):
        E(f"    ds_read_b32 v{64+q}, v12 offset:{((q>>3)*16+(q&7))*128}")
    for q in range(16):
        for h in range(2):
            E(f"    ds_read_b32 v{96+2*q+h}, v13 offset:{4096+h*128+((q>>3)*16+(q&7))*4}")
    E("    s_waitcnt lgkmcnt(0)")
    for q in range(16):
        E(f"    v_add_f32 v{96+2*q}, v{96+2*q}, v{97+2*q}")
    for q in range(8):
        E(f"    v_cvt_pk_bf16_f32 v{20+q}, v{64+2*q}, v{65+2*q}")
        E(f"    v_cvt_pk_bf16_f32 v{28+q}, v{96+4*q}, v{98+4*q}")
    E("    s_mov_b32 s26, 0")
    E("    s_mov_b32 s38, 0")
    E(f"{L}_otile:")
    for r in range(32):
        E(f"    v_mov_b32 v{64+r}, 0")
    E("    s_nop 1")
    E("    v_mfma_f32_32x32x16_bf16 v[64:79], v[20:23], v[208:211], v[64:79]")
    E("    v_mfma_f32_32x32x16_bf16 v[80:95], v[28:31], v[208:211], v[80:95]")
    E("    v_mfma_f32_32x32x16_bf16 v[64:79], v[24:27], v[212:215], v[64:79]")
    E("    v_mfma_f32_32x32x16_bf16 v[80:95], v[32:35], v[212:215], v[80:95]")
    E("    s_nop 7")
    for i in range(24):
        E(f"    v_mov_b32 v{208+i}, v{216+i}")
    E("    v_cvt_pk_bf16_f32 v48, v80, v80")
    E("    v_lshlrev_b32 v48, 16, v48")
    E("    v_add_f32 v48, s42, v48")
    E("    v_cvt_pk_bf16_f32 v48, v48, v48")
    E("    v_lshlrev_b32 v48, 16, v48")
    E("    v_rcp_f32 v48, v48")
    for a in range(4):
        E(f"    v_cvt_pk_bf16_f32 v50, v{64+4*a}, v{65+4*a}")
        E(f"    v_cvt_pk_bf16_f32 v51, v{66+4*a}, v{67+4*a}")
        unpack(52, 53, 50); unpack(54, 55, 51)
        for q in range(4):
            E(f"    v_mul_f32 v{52+q}, v{52+q}, v48")
        E(f"    v_cvt_pk_bf16_f32 v{56+2*(a&1)}, v52, v53")
        E(f"    v_cvt_pk_bf16_f32 v{57+2*(a&1)}, v54, v55")
        E(f"    buffer_store_dwordx2 v[{56+2*(a&1)}:{57+2*(a&1)}], v15, s[76:79], s38 offen offset:{a*16}")
    E("    s_add_u32 s38, s38, 0x10000")
    E("    s_add_u32 s26, s26, 1")
    E("    s_cmp_lt_u32 s26, 4")
    E(f"    s_cbranch_scc1 {L}_otile")
    E(f"{L}_noo2:")
    E("    s_waitcnt lgkmcnt(0)")
    if STAMP:
        E("    s_waitcnt vmcnt(0)")
    stamp(6)
    stamp_dump(7)
    E("    s_endpgm")

def role_final(L):
    E(f"{L}_fin:")
    E("    s_load_dwordx2 s[44:45], s[0:1], 88")
    E("    s_load_dwordx2 s[46:47], s[0:1], 104")
    E("    s_waitcnt lgkmcnt(0)")
    srd_ws(8, 6, 7, WS_O, 0x400000)
    srd(12, 44, 45, 0x200000)
    srd(16, 46, 47, 0x400000)
    srd_ws(60, 6, 7, WS_AT, 0x400000)
    srd_ws(64, 6, 7, WS_G, 0x2000)
    E("    v_and_b32 v1, 63, v0")
    E("    v_lshrrev_b32 v2, 6, v0")
    E("    s_nop 1")
    E("    v_readfirstlane_b32 s20, v2")
    E("    s_nop 3")
    E("    s_lshr_b32 s21, s2, 4")
    E("    s_and_b32 s22, s2, 15")
    E("    s_lshr_b32 s23, s20, 1")
    E("    s_and_b32 s24, s20, 1")
    E("    v_lshrrev_b32 v3, 4, v1")
    E("    v_and_b32 v4, 15, v1")
    E("    v_lshlrev_b32 v4, 4, v4")
    E("    v_lshl_add_u32 v3, v3, 12, v4")
    E("    s_lshl_b32 s25, s22, 18")
    E("    s_lshl_b32 s26, s21, 8")
    E("    s_add_u32 s25, s25, s26")
    E("    s_lshl_b32 s26, s20, 16")
    E("    s_add_u32 s25, s25, s26")
    E("    s_lshl_b32 s26, s20, 12")
    for i in range(4):
        E(f"    s_add_u32 s27, s26, {73728+i*1024}")
        E("    s_mov_b32 m0, s27")
        E(f"    s_add_u32 s28, s25, {i*4*4096}")
        E("    s_nop 0")
        E("    buffer_load_dwordx4 v3, s[60:63], s28 offen lds")
    E("    v_lshrrev_b32 v3, 3, v1")
    E("    v_and_b32 v4, 7, v1")
    E("    v_lshrrev_b32 v5, 1, v3")
    E("    v_xor_b32 v4, v4, v5")
    E("    v_lshlrev_b32 v4, 4, v4")
    E("    v_lshl_add_u32 v2, v3, 11, v4")
    E("    v_xor_b32 v3, 64, v2")
    E("    v_lshrrev_b32 v5, 3, v1")
    E("    v_and_b32 v4, 7, v1")
    E("    v_lshrrev_b32 v6, 1, v5")
    E("    v_and_b32 v6, 1, v6")
    E("    v_lshlrev_b32 v6, 2, v6")
    E("    v_xor_b32 v4, v4, v6")
    E("    v_lshlrev_b32 v4, 4, v4")
    E("    v_lshl_add_u32 v4, v5, 11, v4")
    E("    s_lshl_b32 s25, s22, 7")
    E("    v_add_u32 v4, s25, v4")
    E("    v_and_b32 v7, 31, v1")
    E("    v_lshrrev_b32 v8, 5, v1")
    E("    v_lshrrev_b32 v9, 1, v7")
    E("    v_and_b32 v9, 7, v9")
    E("    s_lshl_b32 s26, s23, 13")
    for sidx in range(4):
        E(f"    v_add_u32 v10, {2*sidx}, v8")
        E("    v_xor_b32 v10, v10, v9")
        E("    v_lshlrev_b32 v10, 4, v10")
        E("    v_lshl_add_u32 v10, v7, 7, v10")
        E(f"    v_add_u32 v{12+sidx}, s26, v10")
    E("    v_and_b32 v10, 15, v1")
    E("    v_lshrrev_b32 v10, 2, v10")
    E("    v_lshl_add_u32 v11, v8, 3, v10")
    E("    v_lshlrev_b32 v11, 7, v11")
    E("    v_lshrrev_b32 v10, 1, v10")
    E("    v_lshlrev_b32 v10, 6, v10")
    E("    v_lshrrev_b32 v16, 4, v1")
    E("    v_and_b32 v16, 1, v16")
    E("    v_lshlrev_b32 v16, 5, v16")
    E("    v_and_b32 v17, 3, v1")
    E("    v_lshl_add_u32 v16, v17, 3, v16")
    E("    v_mov_b32 v18, v16")
    E("    s_lshl_b32 s26, s24, 6")
    E("    v_add_u32 v16, s26, v16")
    E("    v_xor_b32 v16, v16, v10")
    E("    v_add_u32 v16, v16, v11")
    E("    v_add_u32 v16, 16384, v16")
    E("    s_lshl_b32 s27, s21, 18")
    E("    s_lshl_b32 s28, s20, 16")
    E("    s_add_u32 s27, s27, s28")
    E("    s_lshl_b32 s28, s20, 15")
    E("    s_mov_b32 s29, 0")
    E("    s_mov_b32 s30, 0")
    def dma():
        E("    s_lshl_b32 s31, s29, 7")
        E("    s_add_u32 s31, s31, s27")
        E("    s_lshl_b32 s32, s20, 12")
        E("    s_add_u32 s32, s32, s30")
        for i in range(4):
            E(f"    s_add_u32 s33, s32, {i*1024}")
            E("    s_mov_b32 m0, s33")
            E(f"    s_add_u32 s34, s31, {i*8*2048}")
            E("    s_nop 0")
            E(f"    buffer_load_dwordx4 v{2+(i&1)}, s[8:11], s34 offen lds")
        E("    s_lshl_b32 s31, s29, 17")
        E("    s_add_u32 s31, s31, s28")
        E("    s_lshl_b32 s32, s20, 11")
        E("    s_add_u32 s32, s32, s30")
        E("    s_add_u32 s32, s32, 16384")
        for i in range(2):
            E(f"    s_add_u32 s33, s32, {i*1024}")
            E("    s_mov_b32 m0, s33")
            E(f"    s_add_u32 s34, s31, {i*8*2048}")
            E("    s_nop 0")
            E(f"    buffer_load_dwordx4 v4, s[12:15], s34 offen lds")
        E("    s_add_u32 s29, s29, 1")
        E("    s_add_u32 s30, s30, 24576")
        E("    s_cmp_ge_u32 s30, 73728")
        E("    s_cselect_b32 s30, 0, s30")
    for r in range(32):
        E(f"    v_mov_b32 v{64+r}, 0")
    dma(); dma()
    E("    s_mov_b32 s35, 0")
    E("    s_mov_b32 s36, 0")
    E(f"{L}_fin_loop:")
    E("    s_cmp_lt_u32 s35, 15")
    E(f"    s_cbranch_scc1 {L}_fin_w6")
    E("    s_waitcnt vmcnt(0)")
    E(f"    s_branch {L}_fin_wd")
    E(f"{L}_fin_w6:")
    E("    s_waitcnt vmcnt(6)")
    E(f"{L}_fin_wd:")
    E("    s_barrier")
    E("    s_cmp_lt_u32 s29, 16")
    E(f"    s_cbranch_scc0 {L}_fin_nodma")
    dma()
    E(f"{L}_fin_nodma:")
    for i in range(5):
        E(f"    v_add_u32 v{20+i}, s36, v{12+i}")
    def rd(sx, bb):
        for mt in range(2):
            E(f"    ds_read_b128 v[{28+bb+4*mt}:{31+bb+4*mt}], v{20+sx} offset:{mt*4096}")
        for kq in range(2):
            E(f"    ds_read_b64_tr_b16 v[{36+bb+2*kq}:{37+bb+2*kq}], v24 offset:{sx*16*128+kq*4*128}")
    rd(0, 0)
    for sx in range(4):
        bb = (sx & 1) * 12
        if sx < 3:
            rd(sx+1, 12-bb)
            E("    s_waitcnt lgkmcnt(4)")
        else:
            E("    s_waitcnt lgkmcnt(0)")
        for mt in range(2):
            acc = 64 + mt*16
            E(f"    v_mfma_f32_32x32x16_bf16 v[{acc}:{acc+15}], v[{36+bb}:{39+bb}], v[{28+bb+4*mt}:{31+bb+4*mt}], v[{acc}:{acc+15}]")
    E("    s_add_u32 s36, s36, 24576")
    E("    s_cmp_ge_u32 s36, 73728")
    E("    s_cselect_b32 s36, 0, s36")
    E("    s_add_u32 s35, s35, 1")
    E("    s_cmp_lt_u32 s35, 16")
    E(f"    s_cbranch_scc1 {L}_fin_loop")
    E("    s_lshl_b32 s26, s21, 7")
    E("    s_lshl_b32 s27, s23, 6")
    E("    s_add_u32 s26, s26, s27")
    E("    v_add_u32 v20, s26, v7")
    E("    v_lshlrev_b32 v21, 2, v20")
    E("    buffer_load_dword v22, v21, s[64:67], 0 offen")
    E("    buffer_load_dword v23, v21, s[64:67], 0 offen offset:128")
    E("    v_lshlrev_b32 v20, 11, v20")
    E("    v_lshl_add_u32 v20, v8, 3, v20")
    E("    s_lshl_b32 s26, s22, 7")
    E("    s_lshl_b32 s27, s24, 6")
    E("    s_add_u32 s26, s26, s27")
    E("    v_add_u32 v20, s26, v20")
    E("    v_and_b32 v10, 15, v1")
    E("    v_lshrrev_b32 v10, 2, v10")
    E("    v_lshl_add_u32 v10, v8, 2, v10")
    E("    s_lshl_b32 s26, s24, 5")
    E("    v_add_u32 v10, s26, v10")
    E("    v_lshlrev_b32 v10, 8, v10")
    E("    v_add_u32 v10, v10, v18")
    E("    s_lshl_b32 s26, s23, 7")
    E("    v_add_u32 v10, s26, v10")
    E("    v_add_u32 v10, 73728, v10")
    for mt in range(2):
        for a in range(4):
            E(f"    ds_read_b64_tr_b16 v[{100+(mt*4+a)*2}:{101+(mt*4+a)*2}], v10 offset:{a*8*256+mt*64}")
    E("    s_waitcnt vmcnt(0) lgkmcnt(0)")
    E("    v_sub_f32 v24, 1.0, v22")
    E("    v_sub_f32 v25, 1.0, v23")
    E("    v_cvt_pk_bf16_f32 v24, v24, v25")
    unpack(25, 26, 24)
    for mt in range(2):
        g = 22 + mt; og = 25 + mt
        for a in range(4):
            acc = 64 + mt*16 + 4*a; ab = 100+(mt*4+a)*2
            E(f"    v_cvt_pk_bf16_f32 v40, v{acc}, v{acc+1}")
            E(f"    v_cvt_pk_bf16_f32 v41, v{acc+2}, v{acc+3}")
            unpack(42, 43, 40); unpack(44, 45, 41)
            unpack(46, 47, ab); unpack(48, 49, ab+1)
            for q in range(4):
                E(f"    v_mul_f32 v{42+q}, v{42+q}, v{og}")
                E(f"    v_mul_f32 v{46+q}, v{46+q}, v{g}")
            E("    v_cvt_pk_bf16_f32 v40, v42, v43")
            E("    v_cvt_pk_bf16_f32 v41, v44, v45")
            E("    v_cvt_pk_bf16_f32 v50, v46, v47")
            E("    v_cvt_pk_bf16_f32 v51, v48, v49")
            unpack(42, 43, 40); unpack(44, 45, 41)
            unpack(46, 47, 50); unpack(48, 49, 51)
            for q in range(4):
                E(f"    v_add_f32 v{42+q}, v{42+q}, v{46+q}")
            E(f"    v_cvt_pk_bf16_f32 v{ab}, v42, v43")
            E(f"    v_cvt_pk_bf16_f32 v{ab+1}, v44, v45")
            if mt == 0:
                E(f"    buffer_store_dwordx2 v[{ab}:{ab+1}], v20, s[16:19], 0 offen offset:{a*16}")
            else:
                E(f"    s_mov_b32 s27, {32*2048}")
                E(f"    buffer_store_dwordx2 v[{ab}:{ab+1}], v20, s[16:19], s27 offen offset:{a*16}")
    E("    s_endpgm")

STAMP = os.environ.get("STAMP","") != ""
def stamp(i):
    if not STAMP: return
    E(f"    s_memtime s[{92}:{93}]")
    E("    s_waitcnt lgkmcnt(0)")
    E(f"    s_mov_b32 s{94+i}, s92")
def stamp_dump(n):
    if not STAMP: return
    E("    s_load_dwordx2 s[92:93], s[0:1], 112")
    E("    s_waitcnt lgkmcnt(0)")
    srd(44, 92, 93, 256)
    E("    v_cmp_eq_u32 vcc, 0, v0")
    E("    s_and_saveexec_b64 s[24:25], vcc")
    E("    s_cmp_lg_u32 s2, 1")
    E("    s_cbranch_scc1 stamp_skip%d" % len(out))
    lab = "stamp_skip%d" % (len(out)-1)
    E("    v_mov_b32 v1, 0")
    for i in range(n):
        E(f"    v_mov_b32 v2, s{94+i}")
        E(f"    buffer_store_dword v2, v1, s[44:47], 0 offen offset:{4*i}")
    E(lab + ":")
def common_prologue():
    E("    s_load_dwordx2 s[4:5], s[0:1], 0")
    E("    s_load_dwordx2 s[6:7], s[0:1], 120")
    E("    s_waitcnt lgkmcnt(0)")

import os
SKIP = os.environ.get("SKIP","").split(",")
def build(stage):
    E("; generated by dev/gen.py")
    E("; @launch kernel=k1_kernel grid=(768,1,1) block=(256,1,1) lds=81920")
    E("; @launch kernel=k2_kernel grid=(256,1,1) block=(256,1,1) lds=129024")
    E("; @launch kernel=k3_kernel grid=(256,1,1) block=(256,1,1) lds=90112")
    E('.amdgcn_target "amdgcn-amd-amdhsa--gfx950"')
    kernel_begin("k1_kernel")
    common_prologue()
    E("    s_cmp_lt_u32 s2, 256")
    E("    s_cbranch_scc1 " + ("kx_end" if "k1_qkv" in SKIP else "k1_qkv"))
    E("    s_sub_u32 s2, s2, 256")
    E("    s_cmp_lt_u32 s2, 256")
    E("    s_cbranch_scc1 " + ("kx_end" if "k1_kg" in SKIP else "k1_kg"))
    E("    s_sub_u32 s2, s2, 256")
    E("    s_cmp_lt_u32 s2, 256")
    E("    s_cbranch_scc1 " + ("kx_end" if "k1_tr" in SKIP else "k1_tr"))
    E("    s_endpgm")
    role_qkv("k1")
    role_kgen("k1")
    role_transpose("k1")
    E("kx_end:")
    E("    s_endpgm")
    kernel_begin("k2_kernel")
    common_prologue()
    E("    s_cmp_lt_u32 s2, 256")
    E("    s_cbranch_scc1 k2_main")
    E("    s_endpgm")
    role_k2("k2")
    kernel_begin("k3_kernel")
    common_prologue()
    E("    s_cmp_lt_u32 s2, 256")
    E("    s_cbranch_scc1 k3_fin")
    E("    s_endpgm")
    role_final("k3")
    kernel_desc("k1_kernel", 160)
    kernel_desc("k2_kernel", 256)
    kernel_desc("k3_kernel", 128)

if __name__ == "__main__":
    build(sys.argv[1] if len(sys.argv) > 1 else "a")
    open(sys.argv[2] if len(sys.argv) > 2 else "cur.s", "w").write("\n".join(out) + "\n")
```

```python
import sys, os

WS_UT  = 0x0000000
WS_KB  = 0x0400000
KB_ROW = 5120
WS_PQ  = 0x2000000
WS_KVP = 0x2400000
WS_ZP  = 0x2800000
WS_O   = 0x2900000
WS_AT  = 0x2D00000
WS_G   = 0x3100000
WS_END = 0x3200000

out = []
def E(s=""):
    out.append(s)

def srd(dst, lo, hi, nbytes):
    E(f"    s_mov_b32 s{dst}, s{lo}")
    E(f"    s_and_b32 s{dst+1}, s{hi}, 0xffff")
    E(f"    s_mov_b32 s{dst+2}, {hex(nbytes)}")
    E(f"    s_mov_b32 s{dst+3}, 0x00020000")

def srd_ws(dst, lo, hi, off, nbytes):
    E(f"    s_add_u32 s{dst}, s{lo}, {hex(off)}")
    E(f"    s_addc_u32 s{dst+1}, s{hi}, 0")
    E(f"    s_and_b32 s{dst+1}, s{dst+1}, 0xffff")
    E(f"    s_mov_b32 s{dst+2}, {hex(nbytes)}")
    E(f"    s_mov_b32 s{dst+3}, 0x00020000")

def kernel_begin(name):
    E(".text")
    E(f".globl {name}")
    E(".p2align 8")
    E(f".type {name},@function")
    E(f"{name}:")

def kernel_desc(name, vgpr, sgpr=102):
    acc = (vgpr + 3) // 4 * 4
    E('.section .rodata,"a"')
    E(".p2align 6")
    E(f".amdhsa_kernel {name}")
    E(f"  .amdhsa_next_free_vgpr {vgpr}")
    E(f"  .amdhsa_next_free_sgpr {sgpr}")
    E(f"  .amdhsa_accum_offset {acc}")
    E("  .amdhsa_group_segment_fixed_size 0")
    E("  .amdhsa_kernarg_size 128")
    E("  .amdhsa_user_sgpr_count 2")
    E("  .amdhsa_user_sgpr_kernarg_segment_ptr 1")
    E("  .amdhsa_system_sgpr_workgroup_id_x 1")
    E(".end_amdhsa_kernel")

LOG2E = 0x3fb8aa3b
INV2PI = 0x3e22f983

def role_transpose(L):
    E(f"{L}_tr:")
    E("    s_and_b32 s26, s2, 7")
    E("    s_lshr_b32 s2, s2, 3")
    srd(8, 4, 5, 0x400000)
    srd_ws(12, 6, 7, WS_UT, 0x400000)
    E("    v_and_b32 v1, 63, v0")
    E("    v_lshrrev_b32 v2, 6, v0")
    E("    s_nop 1")
    E("    v_readfirstlane_b32 s20, v2")
    E("    s_nop 3")
    E("    v_lshrrev_b32 v3, 4, v1")
    E("    v_lshlrev_b32 v3, 11, v3")
    E("    v_and_b32 v4, 15, v1")
    E("    v_lshlrev_b32 v4, 4, v4")
    E("    v_add_u32 v3, v3, v4")
    E("    s_lshl_b32 s21, s2, 17")
    E("    s_lshl_b32 s22, s20, 15")
    E("    s_add_u32 s21, s21, s22")
    E("    s_lshl_b32 s23, s20, 12")
    E("    v_and_b32 v5, 15, v1")
    E("    v_lshrrev_b32 v5, 2, v5")
    E("    v_lshlrev_b32 v5, 8, v5")
    E("    v_and_b32 v6, 3, v1")
    E("    v_lshlrev_b32 v6, 3, v6")
    E("    v_lshrrev_b32 v7, 4, v1")
    E("    v_lshlrev_b32 v7, 5, v7")
    E("    v_add3_u32 v5, v5, v6, v7")
    E("    v_add_u32 v5, s23, v5")
    E("    v_and_b32 v6, 15, v1")
    E("    v_lshrrev_b32 v7, 4, v1")
    E("    v_lshl_add_u32 v6, v7, 4, v6")
    E("    v_lshlrev_b32 v6, 12, v6")
    E("    s_lshl_b32 s24, s2, 7")
    E("    s_lshl_b32 s25, s20, 5")
    E("    s_add_u32 s24, s24, s25")
    E("    v_add_u32 v6, s24, v6")
    E(f"{L}_tr_loop:")
    E("    s_lshl_b32 s27, s26, 8")
    E("    s_add_u32 s27, s27, s21")
    for i in range(4):
        E(f"    s_add_u32 s28, s23, {i*1024}")
        E("    s_mov_b32 m0, s28")
        E(f"    s_add_u32 s29, s27, {i*8192}")
        E("    s_nop 0")
        E("    buffer_load_dwordx4 v3, s[8:11], s29 offen lds")
    E("    s_waitcnt vmcnt(0)")
    E("    s_lshl_b32 s30, s26, 19")
    for p in range(2):
        for q in range(4):
            E(f"    ds_read_b64_tr_b16 v[{10+p*8+2*q}:{11+p*8+2*q}], v5 offset:{q*1024+p*128}")
    E("    s_waitcnt lgkmcnt(0)")
    for p in range(2):
        E(f"    s_add_u32 s31, s30, {p*64*4096}")
        E(f"    buffer_store_dwordx4 v[{10+p*8}:{13+p*8}], v6, s[12:15], s31 offen")
        E(f"    buffer_store_dwordx4 v[{14+p*8}:{17+p*8}], v6, s[12:15], s31 offen offset:16")
    E("    s_waitcnt vmcnt(0)")
    E("    s_endpgm")

def cexp(dre, dim, lreg, tmp, are, aim):
    E(f"    v_mul_f32 v{tmp}, v{are}, v{lreg}")
    E(f"    v_mul_f32 v{tmp+1}, v{aim}, v{lreg}")
    E(f"    v_mul_f32 v{tmp}, s40, v{tmp}")
    E(f"    v_mul_f32 v{tmp+1}, s41, v{tmp+1}")
    E(f"    v_exp_f32 v{tmp}, v{tmp}")
    E(f"    v_fract_f32 v{tmp+1}, v{tmp+1}")
    E(f"    v_cos_f32 v{dre}, v{tmp+1}")
    E(f"    v_sin_f32 v{dim}, v{tmp+1}")
    E(f"    s_nop 0")
    E(f"    v_mul_f32 v{dre}, v{dre}, v{tmp}")
    E(f"    v_mul_f32 v{dim}, v{dim}, v{tmp}")

def csq(dre, dim, sre, sim_, tmp):
    E(f"    v_mul_f32 v{tmp}, v{sim_}, v{sim_}")
    E(f"    v_mul_f32 v{dim}, v{sre}, v{sim_}")
    E(f"    v_fma_f32 v{dre}, v{sre}, v{sre}, -v{tmp}")
    E(f"    v_add_f32 v{dim}, v{dim}, v{dim}")

def cmul(dre, dim, are, aim, bre, bim):
    E(f"    v_mul_f32 v{dre}, v{are}, v{bre}")
    E(f"    v_mul_f32 v{dim}, v{are}, v{bim}")
    E(f"    v_fma_f32 v{dre}, -v{aim}, v{bim}, v{dre}")
    E(f"    v_fma_f32 v{dim}, v{aim}, v{bre}, v{dim}")

KG_LDS_WAVE = 18944
KG_LIN = 12544
def role_kgen(L):
    E(f"{L}_kg:")
    E("    s_load_dwordx4 s[44:47], s[0:1], 8")
    E("    s_load_dwordx4 s[48:51], s[0:1], 24")
    E("    s_load_dwordx4 s[52:55], s[0:1], 40")
    E("    s_load_dwordx2 s[56:57], s[0:1], 56")
    E("    s_waitcnt lgkmcnt(0)")
    srd(60, 44, 45, 0x40000)
    srd(64, 46, 47, 0x40000)
    srd(68, 48, 49, 0x40000)
    srd(72, 50, 51, 0x40000)
    srd(76, 52, 53, 0x40000)
    srd(80, 54, 55, 0x40000)
    srd(84, 56, 57, 0x800)
    srd_ws(12, 6, 7, WS_KB, 1024*KB_ROW)
    E(f"    s_mov_b32 s40, {hex(LOG2E)}")
    E(f"    s_mov_b32 s41, {hex(INV2PI)}")
    E("    v_and_b32 v1, 63, v0")
    E("    v_lshrrev_b32 v2, 6, v0")
    E("    s_nop 1")
    E("    v_readfirstlane_b32 s20, v2")
    E("    s_nop 3")
    E("    s_lshl_b32 s21, s2, 2")
    E("    s_add_u32 s21, s21, s20")
    E(f"    s_mul_i32 s22, s20, {KG_LDS_WAVE}")
    E("    s_lshl_b32 s23, s21, 1")
    E("    v_mov_b32 v3, s23")
    E("    buffer_load_ushort v4, v3, s[84:87], 0 offen")
    E("    v_and_b32 v5, 15, v1")
    E("    v_lshrrev_b32 v6, 4, v1")
    E("    v_cvt_f32_u32 v7, v5")
    E("    v_mul_f32 v8, 16.0, v7")
    E("    v_add_f32 v9, v8, v8")
    E("    v_add_f32 v9, 0x43800000, v9")
    E("    v_lshlrev_b32 v10, 6, v6")
    E("    s_lshl_b32 s23, s21, 8")
    E("    v_add_u32 v10, s23, v10")
    E("    s_waitcnt vmcnt(0)")
    E("    v_lshlrev_b32 v4, 16, v4")
    E("    v_mul_f32 v4, s40, v4")
    E("    v_exp_f32 v4, v4")
    E("    s_nop 0")
    E("    v_cvt_pk_bf16_f32 v4, v4, v4")
    E("    v_lshlrev_b32 v4, 16, v4")
    for r in range(16):
        E(f"    v_mov_b32 v{64+r}, 0")
    for i, s in enumerate((60, 64, 68, 72, 76, 80)):
        E(f"    buffer_load_ushort v{12+i}, v10, s[{s}:{s+3}], 0 offen")
    E("    s_mov_b32 s26, 0")
    E(f"{L}_kg_loop:")
    E("    s_waitcnt vmcnt(0)")
    for i in range(6):
        E(f"    v_lshlrev_b32 v{18+i}, 16, v{12+i}")
    E("    v_add_u32 v10, 2, v10")
    E("    s_cmp_lt_u32 s26, 31")
    E(f"    s_cbranch_scc0 {L}_kg_nopf")
    for i, s in enumerate((60, 64, 68, 72, 76, 80)):
        E(f"    buffer_load_ushort v{12+i}, v10, s[{s}:{s+3}], 0 offen")
    E(f"{L}_kg_nopf:")
    E("    v_mul_f32 v18, v4, v18")
    E("    v_mul_f32 v19, v4, v19")
    E("    v_mul_f32 v20, v4, v20")
    E("    v_mul_f32 v21, v4, v21")
    cmul(24, 25, 22, 23, 20, 21)
    cexp(26, 27, 7, 60, 18, 19)
    cexp(34, 35, 8, 60, 18, 19)
    cexp(36, 37, 9, 60, 18, 19)
    csq(28, 29, 26, 27, 60)
    csq(38, 39, 36, 37, 61)
    csq(30, 31, 28, 29, 60)
    csq(40, 41, 38, 39, 61)
    csq(32, 33, 30, 31, 60)
    for s in range(4):
        cmul(42+2*s, 43+2*s, 24, 25, 34+2*s, 35+2*s)
    for s in range(4):
        E(f"    v_xor_b32 v{27+2*s}, 0x80000000, v{27+2*s}")
    E("    s_nop 1")
    for s in range(4):
        E(f"    v_mfma_f32_16x16x4_f32 v[{64+4*s}:{67+4*s}], v{42+2*s}, v{26+2*s}, v[{64+4*s}:{67+4*s}]")
    for s in range(4):
        E(f"    v_mfma_f32_16x16x4_f32 v[{64+4*s}:{67+4*s}], v{43+2*s}, v{27+2*s}, v[{64+4*s}:{67+4*s}]")
    E("    s_add_u32 s26, s26, 1")
    E("    s_cmp_lt_u32 s26, 32")
    E(f"    s_cbranch_scc1 {L}_kg_loop")
    E("    s_nop 7")
    E("    s_nop 7")
    E("    v_lshlrev_b32 v11, 6, v6")
    E("    v_add_u32 v11, v11, v5")
    for s in range(4):
        base = [0, 256, 512, 1024][s]
        E(f"    v_lshlrev_b32 v12, {s+2}, v11")
        E(f"    v_add_u32 v12, s22, v12")
        for r in range(4):
            E(f"    ds_write_b32 v12, v{64+4*s+r} offset:{base*4 + r*16*(1<<s)*4}")
    E("    s_waitcnt lgkmcnt(0)")
    E(f"    s_mul_i32 s23, s21, {KB_ROW}")
    E("    v_lshlrev_b32 v13, 4, v1")
    E("    v_add_u32 v13, s23, v13")
    E("    v_lshlrev_b32 v14, 3, v1")
    cp = 0
    E("    v_lshlrev_b32 v15, 4, v1")
    E("    v_add_u32 v15, s22, v15")
    if True:
      for it in range(5):
        for j in range(8):
            E(f"    v_sub_u32 v{20+j}, {2047 - it*512 - j - cp}, v14")
            E(f"    v_max_i32 v{50+j}, 0, v{20+j}")
            E(f"    v_cvt_f32_u32 v{50+j}, v{50+j}")
            E(f"    v_cvt_pk_bf16_f32 v{50+j}, v{50+j}, v{50+j}")
            E(f"    v_lshlrev_b32 v{50+j}, 16, v{50+j}")
            E(f"    v_cvt_u32_f32 v{50+j}, v{50+j}")
            E(f"    v_lshlrev_b32 v{50+j}, 2, v{50+j}")
            E(f"    v_add_u32 v{50+j}, s22, v{50+j}")
        for j in range(8):
            E(f"    ds_read_b32 v{30+j}, v{50+j}")
        E("    s_waitcnt lgkmcnt(0)")
        for j in range(8):
            E(f"    v_cmp_gt_i32 vcc, 0, v{20+j}")
            E("    s_nop 1")
            E(f"    v_cndmask_b32 v{30+j}, v{30+j}, 0, vcc")
        for j in range(4):
            E(f"    v_cvt_pk_bf16_f32 v{40+j}, v{30+2*j}, v{31+2*j}")
        E(f"    s_mov_b32 s23, {cp*5120+it*1024}")
        E(f"    buffer_store_dwordx4 v[40:43], v13, s[12:15], s23 offen")
        E("    s_nop 1")
    E("    s_endpgm")

def unpack(d0, d1, src):
    E(f"    v_lshlrev_b32 v{d0}, 16, v{src}")
    E(f"    v_and_b32 v{d1}, 0xffff0000, v{src}")

def phi_pair(dst, a0, a1, t):
    E(f"    v_cvt_pk_bf16_f32 v{t}, v{a0}, v{a1}")
    unpack(t+1, t+2, t)
    E(f"    v_add_f32 v{t+3}, 1.0, v{t+1}")
    E(f"    v_add_f32 v{t+4}, 1.0, v{t+2}")
    E(f"    v_mul_f32 v{t+5}, s40, v{t+1}")
    E(f"    v_mul_f32 v{t+6}, s40, v{t+2}")
    E(f"    v_exp_f32 v{t+5}, v{t+5}")
    E(f"    v_exp_f32 v{t+6}, v{t+6}")
    E(f"    v_cvt_pk_bf16_f32 v{t+3}, v{t+3}, v{t+4}")
    E(f"    v_cmp_lt_f32 vcc, 0, v{t+1}")
    E(f"    v_cvt_pk_bf16_f32 v{t+5}, v{t+5}, v{t+6}")
    unpack(t+4, t+6, t+3)
    E(f"    v_lshlrev_b32 v{t+3}, 16, v{t+5}")
    E(f"    v_and_b32 v{t+5}, 0xffff0000, v{t+5}")
    E(f"    v_cndmask_b32 v{t+3}, v{t+3}, v{t+4}, vcc")
    E(f"    v_cmp_lt_f32 vcc, 0, v{t+2}")
    E(f"    v_add_f32 v{t+3}, s42, v{t+3}")
    E(f"    s_nop 0")
    E(f"    v_cndmask_b32 v{t+5}, v{t+5}, v{t+6}, vcc")
    E(f"    v_add_f32 v{t+5}, s42, v{t+5}")
    E(f"    v_cvt_pk_bf16_f32 v{dst}, v{t+3}, v{t+5}")

EPS6 = 0x358637bd

def role_qkv(L):
    E(f"{L}_qkv:")
    stamp(0)
    E("    s_load_dwordx2 s[44:45], s[0:1], 80")
    E("    s_waitcnt lgkmcnt(0)")
    srd(8, 4, 5, 0x400000)
    srd(12, 44, 45, 0x600000)
    srd_ws(16, 6, 7, WS_PQ, 0x400000)
    srd_ws(60, 6, 7, WS_KVP, 0x400000)
    srd_ws(64, 6, 7, WS_ZP, 0x40000)
    E(f"    s_mov_b32 s40, {hex(LOG2E)}")
    E(f"    s_mov_b32 s42, {hex(EPS6)}")
    E("    v_and_b32 v1, 63, v0")
    E("    v_lshrrev_b32 v2, 6, v0")
    E("    s_nop 1")
    E("    v_readfirstlane_b32 s20, v2")
    E("    s_nop 3")
    E("    s_and_b32 s25, s2, 7")
    E("    s_lshr_b32 s26, s2, 3")
    E("    s_lshr_b32 s21, s25, 1")
    E("    s_lshl_b32 s21, s21, 2")
    E("    s_lshr_b32 s27, s26, 3")
    E("    s_add_u32 s21, s21, s27")
    E("    s_and_b32 s22, s25, 1")
    E("    s_lshl_b32 s22, s22, 3")
    E("    s_and_b32 s27, s26, 7")
    E("    s_add_u32 s22, s22, s27")
    E("    s_lshr_b32 s23, s20, 1")
    E("    s_and_b32 s24, s20, 1")
    E("    v_lshrrev_b32 v3, 2, v1")
    E("    v_and_b32 v4, 3, v1")
    E("    v_lshrrev_b32 v5, 2, v3")
    E("    v_xor_b32 v4, v4, v5")
    E("    v_lshlrev_b32 v4, 4, v4")
    E("    v_lshl_add_u32 v2, v3, 11, v4")
    E("    s_lshl_b32 s25, s22, 7")
    for c in range(3):
        E(f"    v_add_u32 v7, {64*c}, v1")
        E("    v_mul_u32_u24 v8, 171, v7")
        E("    v_lshrrev_b32 v8, 12, v8")
        E("    v_mul_u32_u24 v9, 24, v8")
        E("    v_sub_u32 v9, v7, v9")
        E("    v_lshrrev_b32 v10, 1, v8")
        E("    v_and_b32 v10, 1, v10")
        E("    v_lshlrev_b32 v10, 2, v10")
        E("    v_xor_b32 v9, v9, v10")
        E("    v_lshrrev_b32 v10, 3, v9")
        E("    v_and_b32 v9, 7, v9")
        E("    v_lshlrev_b32 v9, 4, v9")
        E("    v_lshl_add_u32 v9, v10, 11, v9")
        E("    v_mul_u32_u24 v8, 6144, v8")
        E(f"    v_add3_u32 v{4+c}, v8, v9, s25")
    E("    v_and_b32 v7, 31, v1")
    E("    v_lshrrev_b32 v8, 5, v1")
    E("    v_lshrrev_b32 v9, 2, v7")
    E("    v_and_b32 v9, 3, v9")
    E("    s_lshl_b32 s26, s23, 12")
    for sidx in range(2):
        E(f"    v_add_u32 v10, {2*sidx}, v8")
        E("    v_xor_b32 v10, v10, v9")
        E("    v_lshlrev_b32 v10, 4, v10")
        E("    v_lshl_add_u32 v10, v7, 6, v10")
        E(f"    v_add_u32 v{12+sidx}, s26, v10")
    E("    v_and_b32 v10, 15, v1")
    E("    v_lshrrev_b32 v10, 2, v10")
    E("    v_lshl_add_u32 v11, v8, 3, v10")
    E("    v_mul_u32_u24 v11, 384, v11")
    E("    v_lshrrev_b32 v10, 1, v10")
    E("    v_lshlrev_b32 v10, 6, v10")
    E("    v_lshrrev_b32 v16, 4, v1")
    E("    v_and_b32 v16, 1, v16")
    E("    v_lshlrev_b32 v16, 5, v16")
    E("    v_and_b32 v17, 3, v1")
    E("    v_lshl_add_u32 v16, v17, 3, v16")
    E("    s_lshl_b32 s26, s24, 6")
    E("    v_add_u32 v16, s26, v16")
    E("    v_xor_b32 v16, v16, v10")
    E("    v_add_u32 v16, v16, v11")
    E("    v_add_u32 v16, 8192, v16")
    E("    s_lshl_b32 s27, s21, 18")
    E("    s_lshl_b32 s28, s20, 16")
    E("    s_add_u32 s27, s27, s28")
    E("    s_mul_i32 s28, s20, 8*6144")
    E("    s_mov_b32 s29, 0")
    E("    s_mov_b32 s30, 0")
    def dma():
        E("    s_lshl_b32 s31, s29, 6")
        E("    s_add_u32 s31, s31, s27")
        E("    s_lshl_b32 s32, s20, 11")
        E("    s_add_u32 s32, s32, s30")
        for i in range(2):
            E(f"    s_add_u32 s33, s32, {i*1024}")
            E("    s_mov_b32 m0, s33")
            E(f"    s_add_u32 s34, s31, {i*16*2048}")
            E("    s_nop 0")
            E(f"    buffer_load_dwordx4 v2, s[8:11], s34 offen lds")
        E("    s_mul_i32 s31, s29, 32*6144")
        E("    s_add_u32 s31, s31, s28")
        E("    s_mul_i32 s32, s20, 3072")
        E("    s_add_u32 s32, s32, s30")
        E("    s_add_u32 s32, s32, 8192")
        for i in range(3):
            E(f"    s_add_u32 s33, s32, {i*1024}")
            E("    s_mov_b32 m0, s33")
            E("    s_nop 0")
            E(f"    buffer_load_dwordx4 v{4+i}, s[12:15], s31 offen lds")
        E("    s_add_u32 s29, s29, 1")
        E("    s_add_u32 s30, s30, 20480")
        E("    s_cmp_ge_u32 s30, 81920")
        E("    s_cselect_b32 s30, 0, s30")
    for r in range(96):
        E(f"    v_mov_b32 v{64+r}, 0")
    dma(); dma(); dma()
    stamp(1)
    E("    s_mov_b32 s35, 0")
    E("    s_mov_b32 s36, 0")
    E(f"{L}_qkv_loop:")
    E("    s_cmp_lt_u32 s35, 30")
    E(f"    s_cbranch_scc1 {L}_qkv_wa")
    E("    s_cmp_lt_u32 s35, 31")
    E(f"    s_cbranch_scc1 {L}_qkv_wb")
    E("    s_waitcnt vmcnt(0)")
    E(f"    s_branch {L}_qkv_wd")
    E(f"{L}_qkv_wb:")
    E("    s_waitcnt vmcnt(5)")
    E(f"    s_branch {L}_qkv_wd")
    E(f"{L}_qkv_wa:")
    E("    s_waitcnt vmcnt(10)")
    E(f"{L}_qkv_wd:")
    E("    s_barrier")
    E("    s_cmp_lt_u32 s29, 32")
    E(f"    s_cbranch_scc0 {L}_qkv_nodma")
    dma()
    E(f"{L}_qkv_nodma:")
    E("    v_add_u32 v17, s36, v12")
    E("    v_add_u32 v18, s36, v13")
    E("    v_add_u32 v21, s36, v16")
    def rd(sx, bb):
        for mt in range(2):
            E(f"    ds_read_b128 v[{24+bb+4*mt}:{27+bb+4*mt}], v{17+sx} offset:{mt*2048}")
        for p in range(3):
            for kq in range(2):
                E(f"    ds_read_b64_tr_b16 v[{32+bb+4*p+2*kq}:{33+bb+4*p+2*kq}], v21 offset:{sx*16*384+kq*4*384+p*128}")
    rd(0, 0)
    rd(1, 20)
    for sx in range(2):
        bb = sx * 20
        E("    s_waitcnt lgkmcnt(8)" if sx == 0 else "    s_waitcnt lgkmcnt(0)")
        for mt in range(2):
            A = f"v[{24+bb+4*mt}:{27+bb+4*mt}]"
            for p in range(3):
                Bf = f"v[{32+bb+4*p}:{35+bb+4*p}]"
                acc = 64 + (mt*3+p)*16
                if p == 0:
                    E(f"    v_mfma_f32_32x32x16_bf16 v[{acc}:{acc+15}], {Bf}, {A}, v[{acc}:{acc+15}]")
                else:
                    E(f"    v_mfma_f32_32x32x16_bf16 v[{acc}:{acc+15}], {A}, {Bf}, v[{acc}:{acc+15}]")
    E("    s_add_u32 s36, s36, 20480")
    E("    s_cmp_ge_u32 s36, 81920")
    E("    s_cselect_b32 s36, 0, s36")
    E("    s_add_u32 s35, s35, 1")
    E("    s_cmp_lt_u32 s35, 32")
    E(f"    s_cbranch_scc1 {L}_qkv_loop")
    E("    s_nop 7")
    E("    s_nop 7")
    stamp(2)
    E("    s_lshl_b32 s26, s21, 7")
    E("    s_lshl_b32 s27, s23, 6")
    E("    s_add_u32 s26, s26, s27")
    E("    v_add_u32 v20, s26, v7")
    E("    v_lshlrev_b32 v20, 11, v20")
    E("    v_lshl_add_u32 v20, v8, 3, v20")
    E("    s_lshl_b32 s26, s22, 7")
    E("    s_lshl_b32 s27, s24, 6")
    E("    s_add_u32 s26, s26, s27")
    E("    v_add_u32 v20, s26, v20")
    for mt in range(2):
        acc = 64 + (mt*3)*16
        for a in range(4):
            phi_pair(22, acc+4*a, acc+4*a+1, 40)
            phi_pair(23, acc+4*a+2, acc+4*a+3, 40)
            E(f"    buffer_store_dwordx2 v[22:23], v20, s[16:19], 0 offen offset:{mt*32*2048+a*16}" if mt*32*2048+a*16 < 4096 else
              f"    s_mov_b32 s27, {mt*32*2048}\n    buffer_store_dwordx2 v[22:23], v20, s[16:19], s27 offen offset:{a*16}")
            E("    s_nop 1")
    stamp(3)
    E("    v_mov_b32 v21, 0")
    for r in range(16):
        E(f"    v_mov_b32 v{48+r}, 0")
    for mt in range(2):
        kacc = 64 + (mt*3+1)*16
        vacc = 64 + (mt*3+2)*16
        for hh in range(2):
            for j in range(4):
                phi_pair(24+j, kacc+8*hh+2*j, kacc+8*hh+2*j+1, 40)
                unpack(22, 23, 24+j)
                E("    v_add_f32 v21, v21, v22")
                E("    v_add_f32 v21, v21, v23")
                E(f"    v_cvt_pk_bf16_f32 v{28+j}, v{vacc+8*hh+2*j}, v{vacc+8*hh+2*j+1}")
            E("    s_nop 1")
            E("    v_mfma_f32_32x32x16_bf16 v[48:63], v[24:27], v[28:31], v[48:63]")
            E("    s_nop 1")
    E("    s_nop 7")
    E("    s_nop 3")
    E("    s_barrier")
    E("    v_lshlrev_b32 v22, 2, v1")
    E("    s_lshl_b32 s26, s24, 13")
    E("    v_add_u32 v22, s26, v22")
    E("    s_cmp_eq_u32 s23, 0")
    E(f"    s_cbranch_scc1 {L}_qkv_red0")
    for r in range(16):
        E(f"    ds_write_b32 v22, v{48+r} offset:{r*256}")
    E("    ds_write_b32 v22, v21 offset:4096")
    E("    s_waitcnt lgkmcnt(0)")
    E("    s_barrier")
    E("    s_endpgm")
    E(f"{L}_qkv_red0:")
    E("    s_barrier")
    for r in range(16):
        E(f"    ds_read_b32 v{24+r}, v22 offset:{r*256}")
    E("    ds_read_b32 v23, v22 offset:4096")
    E("    s_waitcnt lgkmcnt(0)")
    for r in range(16):
        E(f"    v_add_f32 v{48+r}, v{48+r}, v{24+r}")
    E("    v_add_f32 v21, v21, v23")
    E("    s_mov_b32 s26, s21")
    E("    s_lshl_b32 s27, s22, 1")
    E("    s_add_u32 s27, s27, s24")
    E("    s_lshl_b32 s28, s26, 5")
    E("    s_add_u32 s28, s28, s27")
    E("    s_lshl_b32 s28, s28, 12")
    E("    v_lshlrev_b32 v22, 2, v7")
    E("    v_lshl_add_u32 v22, v8, 9, v22")
    E("    v_add_u32 v22, s28, v22")
    for a in range(4):
        for b in range(4):
            E(f"    buffer_store_dword v{48+4*a+b}, v22, s[60:63], 0 offen offset:{(8*a+b)*128}")
    E("    s_lshl_b32 s28, s26, 13")
    E("    s_lshl_b32 s29, s27, 7")
    E("    s_add_u32 s28, s28, s29")
    E("    v_lshlrev_b32 v22, 2, v7")
    E("    v_lshl_add_u32 v22, v8, 12, v22")
    E("    v_add_u32 v22, s28, v22")
    E("    buffer_store_dword v21, v22, s[64:67], 0 offen")
    stamp(4)
    stamp_dump(5)
    E("    s_endpgm")

CV_LDS_WAVE = 30976
KS = 5184
ZB = 20736
O_LDS = 123904
def role_k2(L):
    E(f"{L}_main:")
    stamp(0)
    E("    s_load_dwordx2 s[44:45], s[0:1], 64")
    E("    s_load_dwordx2 s[46:47], s[0:1], 96")
    E("    s_waitcnt lgkmcnt(0)")
    srd(60, 44, 45, 0x800)
    srd_ws(8, 6, 7, WS_KB, 1024*KB_ROW)
    srd_ws(12, 6, 7, WS_UT, 0x400000)
    srd_ws(16, 6, 7, WS_AT, 0x400000)
    srd_ws(64, 6, 7, WS_KVP, 0x400000)
    srd_ws(68, 6, 7, WS_ZP, 0x40000)
    srd_ws(72, 6, 7, WS_PQ, 0x400000)
    srd_ws(76, 6, 7, WS_O, 0x400000)
    srd(80, 4, 5, 0x400000)
    srd(84, 46, 47, 0x800)
    srd_ws(88, 6, 7, WS_G, 0x2000)
    E(f"    s_mov_b32 s40, {hex(LOG2E)}")
    E(f"    s_mov_b32 s42, {hex(EPS6)}")
    E("    v_and_b32 v1, 63, v0")
    E("    v_lshrrev_b32 v2, 6, v0")
    E("    s_nop 1")
    E("    v_readfirstlane_b32 s20, v2")
    E("    s_nop 3")
    E("    s_lshl_b32 s21, s2, 2")
    E("    s_add_u32 s21, s21, s20")
    E(f"    s_mul_i32 s22, s20, {CV_LDS_WAVE}")
    E("    s_lshr_b32 s36, s2, 3")
    E("    s_and_b32 s37, s2, 7")
    E("    v_lshlrev_b32 v3, 4, v1")
    E("    v_and_b32 v6, 31, v1")
    E("    v_lshrrev_b32 v7, 5, v1")
    E("    v_lshlrev_b32 v5, 2, v6")
    E(f"    s_mul_i32 s23, s21, {KB_ROW}")
    E("    s_lshl_b32 s25, s21, 12")
    E("    s_mov_b32 s24, s22")
    E("    v_mov_b32 v12, v1")
    E("    s_mov_b32 s26, 0")
    E(f"{L}_dma:")
    E("    s_mov_b32 m0, s24")
    E("    v_mul_u32_u24 v13, 205, v12")
    E("    v_lshrrev_b32 v13, 10, v13")
    E("    buffer_load_dwordx4 v3, s[8:11], s23 offen lds")
    E("    v_mul_u32_u24 v14, 5, v13")
    E("    v_sub_u32 v14, v12, v14")
    E("    v_min_u32 v14, 3, v14")
    E("    v_lshlrev_b32 v14, 4, v14")
    E("    v_lshl_add_u32 v14, v13, 6, v14")
    E(f"    s_add_u32 s27, s24, {ZB+5120}")
    E("    s_mov_b32 m0, s27")
    E("    v_add_u32 v12, 64, v12")
    E("    buffer_load_dwordx4 v14, s[12:15], s25 offen lds")
    E("    s_add_u32 s24, s24, 1024")
    E("    s_add_u32 s23, s23, 1024")
    E("    s_add_u32 s26, s26, 1")
    E("    s_cmp_lt_u32 s26, 5")
    E(f"    s_cbranch_scc1 {L}_dma")
    E("    s_lshl_b32 s26, s21, 1")
    E("    v_mov_b32 v4, s26")
    E("    buffer_load_ushort v4, v4, s[60:63], 0 offen")
    E("    s_lshl_b32 s23, s20, 7")
    E("    s_lshl_b32 s24, s37, 9")
    E("    s_add_u32 s23, s23, s24")
    E("    v_add_u32 v10, s23, v6")
    E("    v_lshlrev_b32 v10, 11, v10")
    E("    s_lshl_b32 s23, s36, 6")
    E("    v_add_u32 v10, s23, v10")
    E("    v_lshl_add_u32 v11, v7, 4, v10")
    E("    v_lshl_add_u32 v15, v7, 3, v10")
    E("    s_cmp_ge_u32 s37, 4")
    E(f"    s_cbranch_scc1 {L}_noo1")
    E("    s_lshl_b32 s23, s36, 12")
    E("    s_lshl_b32 s24, s20, 10")
    E("    s_add_u32 s23, s23, s24")
    for pp in range(16):
        E(f"    buffer_load_dwordx4 v[{128+pp*4}:{131+pp*4}], v3, s[64:67], s23 offen")
        E(f"    s_add_u32 s23, s23, {32*4096}")
    E("    v_lshl_add_u32 v12, v7, 16, v5")
    E("    s_lshl_b32 s23, s36, 7")
    for i in range(16):
        E(f"    buffer_load_dword v{192+i}, v12, s[68:71], s23 offen")
        E(f"    s_add_u32 s23, s23, 4096")
    for tl in range(4):
        E(f"    s_mov_b32 s38, {tl*0x10000}")
        E(f"    buffer_load_dwordx4 v[{208+8*tl}:{211+8*tl}], v11, s[72:75], s38 offen")
        E(f"    buffer_load_dwordx4 v[{212+8*tl}:{215+8*tl}], v11, s[72:75], s38 offen offset:32")
    E(f"{L}_noo1:")
    E("    buffer_load_dwordx4 v[24:27], v3, s[84:87], 0 offen")
    E("    buffer_load_dwordx4 v[28:31], v3, s[84:87], 0 offen offset:1024")
    E("    s_lshl_b32 s39, s21, 1")
    E("    s_lshl_b32 s23, s39, 11")
    E("    buffer_load_dwordx4 v[240:243], v3, s[80:83], s23 offen")
    E("    buffer_load_dwordx4 v[244:247], v3, s[80:83], s23 offen offset:1024")
    E("    buffer_load_dwordx4 v[248:251], v3, s[80:83], s23 offen offset:2048")
    E("    buffer_load_dwordx4 v[252:255], v3, s[80:83], s23 offen offset:3072")
    for j in range(4):
        E(f"    v_mov_b32 v{16+j}, 0")
    E(f"    v_add_u32 v12, s22, v3")
    for i in range(5):
        E(f"    ds_write_b128 v12, v[16:19] offset:{ZB+i*1024}")
    stamp(1)
    E("    s_cmp_ge_u32 s37, 4")
    E(f"    s_cbranch_scc1 {L}_w6")
    E("    s_waitcnt vmcnt(46)")
    E(f"    s_branch {L}_wd")
    E(f"{L}_w6:")
    E("    s_waitcnt vmcnt(6)")
    E(f"{L}_wd:")
    stamp(2)
    E("    v_add_u32 v13, 2, v12")
    E(f"    v_add_u32 v14, {KS}, v12")
    E("    s_mov_b32 s26, 0")
    E(f"{L}_shf:")
    for it in range(5):
        E(f"    ds_read_b128 v[{64+4*it}:{67+4*it}], v13 offset:{it*1024}")
    E("    s_waitcnt lgkmcnt(0)")
    for it in range(5):
        E(f"    ds_write_b128 v14, v[{64+4*it}:{67+4*it}] offset:{it*1024}")
    E("    v_add_u32 v13, 2, v13")
    E(f"    v_add_u32 v14, {KS}, v14")
    E("    s_add_u32 s26, s26, 1")
    E("    s_cmp_lt_u32 s26, 3")
    E(f"    s_cbranch_scc1 {L}_shf")
    E("    s_waitcnt lgkmcnt(0)")
    stamp(4)
    E("    v_lshlrev_b32 v8, 3, v7")
    E("    v_sub_u32 v8, v8, v6")
    E("    v_add_u32 v8, 31, v8")
    E("    v_and_b32 v12, 3, v8")
    E("    v_sub_u32 v8, v8, v12")
    E("    v_lshlrev_b32 v8, 1, v8")
    E(f"    v_mul_u32_u24 v12, {KS}, v12")
    E("    v_add_u32 v8, v8, v12")
    E("    v_add_u32 v8, s22, v8")
    E("    v_add_u32 v9, 1, v6")
    E("    v_mul_u32_u24 v9, 80, v9")
    E("    v_lshl_add_u32 v9, v7, 4, v9")
    E(f"    v_add_u32 v9, {ZB}, v9")
    E("    v_add_u32 v9, s22, v9")
    E(f"    v_add_u32 v8, {2*(992-64)}, v8")
    E(f"    v_add_u32 v9, {(63-1-2)*80}, v9")
    for r in range(32):
        E(f"    v_mov_b32 v{32+r}, 0")
    def fr(b, i): return 64 + b*32 + i*4
    def reads(dk, b):
        for s in range(2):
            o = 2*(1024 + 64 - 32*dk + 16*s)
            E(f"    ds_read_b64 v[{fr(b,s)}:{fr(b,s)+1}], v8 offset:{o}")
            E(f"    ds_read_b64 v[{fr(b,s)+2}:{fr(b,s)+3}], v8 offset:{o+8}")
        for s in range(2):
            o = 2*(64 - 32*dk + 16*s)
            E(f"    ds_read_b64 v[{fr(b,2+s)}:{fr(b,2+s)+1}], v8 offset:{o}")
            E(f"    ds_read_b64 v[{fr(b,2+s)+2}:{fr(b,2+s)+3}], v8 offset:{o+8}")
        for j in range(2):
            for s in range(2):
                E(f"    ds_read_b128 v[{fr(b,4+2*j+s)}:{fr(b,4+2*j+s)+3}], v9 offset:{(32*j+3-dk)*80+32*s}")
    def mf(b):
        for s in range(2):
            E(f"    v_mfma_f32_32x32x16_bf16 v[32:47], v[{fr(b,s)}:{fr(b,s)+3}], v[{fr(b,4+s)}:{fr(b,4+s)+3}], v[32:47]")
            E(f"    v_mfma_f32_32x32x16_bf16 v[48:63], v[{fr(b,s)}:{fr(b,s)+3}], v[{fr(b,6+s)}:{fr(b,6+s)+3}], v[48:63]")
            E(f"    v_mfma_f32_32x32x16_bf16 v[48:63], v[{fr(b,2+s)}:{fr(b,2+s)+3}], v[{fr(b,4+s)}:{fr(b,4+s)+3}], v[48:63]")
    reads(0, 0)
    E("    s_mov_b32 s26, 0")
    E(f"{L}_conv:")
    reads(1, 1)
    E("    s_waitcnt lgkmcnt(12)")
    mf(0)
    reads(2, 0)
    E("    s_waitcnt lgkmcnt(12)")
    mf(1)
    E("    v_subrev_u32 v8, 128, v8")
    E("    v_subrev_u32 v9, 160, v9")
    E("    s_add_u32 s26, s26, 1")
    E("    s_cmp_lt_u32 s26, 16")
    E(f"    s_cbranch_scc1 {L}_conv")
    E("    s_waitcnt lgkmcnt(0)")
    stamp(5)
    E("    v_lshlrev_b32 v4, 16, v4")
    E("    v_lshlrev_b32 v10, 6, v6")
    E("    v_lshl_add_u32 v10, v7, 3, v10")
    E("    v_mul_u32_u24 v11, 80, v6")
    E("    v_lshl_add_u32 v11, v7, 3, v11")
    E("    v_add_u32 v11, s22, v11")
    E("    s_lshl_b32 s23, s21, 12")
    E("    v_add_u32 v10, s23, v10")
    for j in range(2):
        for a in range(4):
            E(f"    ds_read_b64 v[{64+(j*4+a)*2}:{65+(j*4+a)*2}], v11 offset:{ZB+5120+j*32*80+a*16}")
    E("    s_nop 7")
    E("    s_waitcnt lgkmcnt(0)")
    E("    s_mov_b32 s26, 0")
    E(f"{L}_cep:")
    unpack(100, 101, 64); unpack(102, 103, 65)
    for q in range(4):
        E(f"    v_mul_f32 v{100+q}, v{100+q}, v4")
    E("    v_cvt_pk_bf16_f32 v104, v100, v101")
    E("    v_cvt_pk_bf16_f32 v105, v102, v103")
    E("    v_cvt_pk_bf16_f32 v106, v32, v33")
    E("    v_cvt_pk_bf16_f32 v107, v34, v35")
    unpack(100, 101, 104); unpack(102, 103, 105); unpack(108, 109, 106); unpack(110, 111, 107)
    for q in range(4):
        E(f"    v_add_f32 v{100+q}, v{100+q}, v{108+q}")
    E("    v_cvt_pk_bf16_f32 v104, v100, v101")
    E("    v_cvt_pk_bf16_f32 v105, v102, v103")
    E("    buffer_store_dwordx2 v[104:105], v10, s[16:19], 0 offen")
    for i in range(28):
        E(f"    v_mov_b32 v{32+i}, v{36+i}")
    for i in range(14):
        E(f"    v_mov_b32 v{64+i}, v{66+i}")
    E("    s_add_u32 s26, s26, 1")
    E("    s_cmp_eq_u32 s26, 4")
    E("    s_cselect_b32 s27, 2048-48, 16")
    E("    v_add_u32 v10, s27, v10")
    E("    s_cmp_lt_u32 s26, 8")
    E(f"    s_cbranch_scc1 {L}_cep")
    E("    s_waitcnt vmcnt(0)")
    for i in range(8):
        unpack(64+2*i, 65+2*i, 24+i)
    E("    s_mov_b32 s26, 0")
    E("    s_lshl_b32 s23, s39, 2")
    E("    v_mov_b32 v42, s23")
    E(f"{L}_gate:")
    E("    v_mov_b32 v40, 0")
    for i in range(8):
        unpack(32, 33, 240+i)
        E(f"    v_mul_f32 v32, v32, v{64+2*i}")
        E(f"    v_mul_f32 v33, v33, v{65+2*i}")
        E("    v_cvt_pk_bf16_f32 v32, v32, v33")
        unpack(33, 34, 32)
        E(f"    v_add_f32 v40, v40, v33")
        E(f"    v_add_f32 v40, v40, v34")
    for mod in ("row_shr:1", "row_shr:2", "row_shr:4", "row_shr:8", "row_bcast:15 row_mask:0xa", "row_bcast:31 row_mask:0xc"):
        E("    s_nop 1")
        E(f"    v_add_f32_dpp v40, v40, v40 {mod}")
    E("    s_nop 1")
    E("    v_cvt_pk_bf16_f32 v40, v40, v40")
    E("    v_lshlrev_b32 v40, 16, v40")
    E("    v_mul_f32 v40, s40, v40")
    E("    v_exp_f32 v40, -v40")
    E("    s_nop 0")
    E("    v_add_f32 v40, 1.0, v40")
    E("    v_rcp_f32 v40, v40")
    E("    s_nop 0")
    E("    v_cvt_pk_bf16_f32 v40, v40, v40")
    E("    v_lshlrev_b32 v40, 16, v40")
    E("    v_cmp_eq_u32 vcc, 63, v1")
    E("    s_and_saveexec_b64 s[24:25], vcc")
    E("    buffer_store_dword v40, v42, s[88:91], 0 offen")
    E("    s_mov_b64 exec, s[24:25]")
    E("    v_add_u32 v42, 4, v42")
    for i in range(8):
        E(f"    v_mov_b32 v{240+i}, v{248+i}")
    E("    s_add_u32 s26, s26, 1")
    E("    s_cmp_lt_u32 s26, 2")
    E(f"    s_cbranch_scc1 {L}_gate")
    stamp(3)
    E("    s_cmp_ge_u32 s37, 4")
    E(f"    s_cbranch_scc1 {L}_noo2")
    for pp in range(1, 16):
        for r in range(4):
            E(f"    v_add_f32 v{128+r}, v{128+r}, v{128+pp*4+r}")
    for i in range(1, 16):
        E(f"    v_add_f32 v192, v192, v{192+i}")
    E("    s_lshl_b32 s23, s20, 10")
    E(f"    s_add_u32 s23, s23, {O_LDS}")
    E("    v_add_u32 v12, s23, v3")
    E("    ds_write_b128 v12, v[128:131]")
    E("    v_lshlrev_b32 v12, 2, v1")
    E(f"    v_add_u32 v12, {O_LDS}, v12")
    E("    ds_write_b32 v12, v192 offset:4096")
    E("    s_waitcnt lgkmcnt(0)")
    E("    s_barrier")
    E("    v_lshl_add_u32 v12, v7, 10, v5")
    E(f"    v_add_u32 v12, {O_LDS}, v12")
    E("    v_lshlrev_b32 v13, 5, v7")
    E(f"    v_add_u32 v13, {O_LDS}, v13")
    for q in range(16):
        E(f"    ds_read_b32 v{64+q}, v12 offset:{((q>>3)*16+(q&7))*128}")
    for q in range(16):
        for h in range(2):
            E(f"    ds_read_b32 v{96+2*q+h}, v13 offset:{4096+h*128+((q>>3)*16+(q&7))*4}")
    E("    s_waitcnt lgkmcnt(0)")
    for q in range(16):
        E(f"    v_add_f32 v{96+2*q}, v{96+2*q}, v{97+2*q}")
    for q in range(8):
        E(f"    v_cvt_pk_bf16_f32 v{20+q}, v{64+2*q}, v{65+2*q}")
        E(f"    v_cvt_pk_bf16_f32 v{28+q}, v{96+4*q}, v{98+4*q}")
    E("    s_mov_b32 s26, 0")
    E("    s_mov_b32 s38, 0")
    E(f"{L}_otile:")
    for r in range(32):
        E(f"    v_mov_b32 v{64+r}, 0")
    E("    s_nop 1")
    E("    v_mfma_f32_32x32x16_bf16 v[64:79], v[20:23], v[208:211], v[64:79]")
    E("    v_mfma_f32_32x32x16_bf16 v[80:95], v[28:31], v[208:211], v[80:95]")
    E("    v_mfma_f32_32x32x16_bf16 v[64:79], v[24:27], v[212:215], v[64:79]")
    E("    v_mfma_f32_32x32x16_bf16 v[80:95], v[32:35], v[212:215], v[80:95]")
    E("    s_nop 7")
    for i in range(24):
        E(f"    v_mov_b32 v{208+i}, v{216+i}")
    E("    v_cvt_pk_bf16_f32 v48, v80, v80")
    E("    v_lshlrev_b32 v48, 16, v48")
    E("    v_add_f32 v48, s42, v48")
    E("    v_cvt_pk_bf16_f32 v48, v48, v48")
    E("    v_lshlrev_b32 v48, 16, v48")
    E("    v_rcp_f32 v48, v48")
    for a in range(4):
        E(f"    v_cvt_pk_bf16_f32 v50, v{64+4*a}, v{65+4*a}")
        E(f"    v_cvt_pk_bf16_f32 v51, v{66+4*a}, v{67+4*a}")
        unpack(52, 53, 50); unpack(54, 55, 51)
        for q in range(4):
            E(f"    v_mul_f32 v{52+q}, v{52+q}, v48")
        E(f"    v_cvt_pk_bf16_f32 v{56+2*(a&1)}, v52, v53")
        E(f"    v_cvt_pk_bf16_f32 v{57+2*(a&1)}, v54, v55")
        E(f"    buffer_store_dwordx2 v[{56+2*(a&1)}:{57+2*(a&1)}], v15, s[76:79], s38 offen offset:{a*16}")
    E("    s_add_u32 s38, s38, 0x10000")
    E("    s_add_u32 s26, s26, 1")
    E("    s_cmp_lt_u32 s26, 4")
    E(f"    s_cbranch_scc1 {L}_otile")
    E(f"{L}_noo2:")
    E("    s_waitcnt lgkmcnt(0)")
    if STAMP:
        E("    s_waitcnt vmcnt(0)")
    stamp(6)
    stamp_dump(7)
    E("    s_endpgm")

def role_final(L):
    E(f"{L}_fin:")
    E("    s_load_dwordx2 s[44:45], s[0:1], 88")
    E("    s_load_dwordx2 s[46:47], s[0:1], 104")
    E("    s_waitcnt lgkmcnt(0)")
    srd_ws(8, 6, 7, WS_O, 0x400000)
    srd(12, 44, 45, 0x200000)
    srd(16, 46, 47, 0x400000)
    srd_ws(60, 6, 7, WS_AT, 0x400000)
    srd_ws(64, 6, 7, WS_G, 0x2000)
    E("    v_and_b32 v1, 63, v0")
    E("    v_lshrrev_b32 v2, 6, v0")
    E("    s_nop 1")
    E("    v_readfirstlane_b32 s20, v2")
    E("    s_nop 3")
    E("    s_lshr_b32 s21, s2, 4")
    E("    s_and_b32 s22, s2, 15")
    E("    s_lshr_b32 s23, s20, 1")
    E("    s_and_b32 s24, s20, 1")
    E("    v_lshrrev_b32 v3, 4, v1")
    E("    v_and_b32 v4, 15, v1")
    E("    v_lshlrev_b32 v4, 4, v4")
    E("    v_lshl_add_u32 v3, v3, 12, v4")
    E("    s_lshl_b32 s25, s22, 18")
    E("    s_lshl_b32 s26, s21, 8")
    E("    s_add_u32 s25, s25, s26")
    E("    s_lshl_b32 s26, s20, 16")
    E("    s_add_u32 s25, s25, s26")
    E("    s_lshl_b32 s26, s20, 12")
    for i in range(4):
        E(f"    s_add_u32 s27, s26, {73728+i*1024}")
        E("    s_mov_b32 m0, s27")
        E(f"    s_add_u32 s28, s25, {i*4*4096}")
        E("    s_nop 0")
        E("    buffer_load_dwordx4 v3, s[60:63], s28 offen lds")
    E("    v_lshrrev_b32 v3, 3, v1")
    E("    v_and_b32 v4, 7, v1")
    E("    v_lshrrev_b32 v5, 1, v3")
    E("    v_xor_b32 v4, v4, v5")
    E("    v_lshlrev_b32 v4, 4, v4")
    E("    v_lshl_add_u32 v2, v3, 11, v4")
    E("    v_xor_b32 v3, 64, v2")
    E("    v_lshrrev_b32 v5, 3, v1")
    E("    v_and_b32 v4, 7, v1")
    E("    v_lshrrev_b32 v6, 1, v5")
    E("    v_and_b32 v6, 1, v6")
    E("    v_lshlrev_b32 v6, 2, v6")
    E("    v_xor_b32 v4, v4, v6")
    E("    v_lshlrev_b32 v4, 4, v4")
    E("    v_lshl_add_u32 v4, v5, 11, v4")
    E("    s_lshl_b32 s25, s22, 7")
    E("    v_add_u32 v4, s25, v4")
    E("    v_and_b32 v7, 31, v1")
    E("    v_lshrrev_b32 v8, 5, v1")
    E("    v_lshrrev_b32 v9, 1, v7")
    E("    v_and_b32 v9, 7, v9")
    E("    s_lshl_b32 s26, s23, 13")
    for sidx in range(4):
        E(f"    v_add_u32 v10, {2*sidx}, v8")
        E("    v_xor_b32 v10, v10, v9")
        E("    v_lshlrev_b32 v10, 4, v10")
        E("    v_lshl_add_u32 v10, v7, 7, v10")
        E(f"    v_add_u32 v{12+sidx}, s26, v10")
    E("    v_and_b32 v10, 15, v1")
    E("    v_lshrrev_b32 v10, 2, v10")
    E("    v_lshl_add_u32 v11, v8, 3, v10")
    E("    v_lshlrev_b32 v11, 7, v11")
    E("    v_lshrrev_b32 v10, 1, v10")
    E("    v_lshlrev_b32 v10, 6, v10")
    E("    v_lshrrev_b32 v16, 4, v1")
    E("    v_and_b32 v16, 1, v16")
    E("    v_lshlrev_b32 v16, 5, v16")
    E("    v_and_b32 v17, 3, v1")
    E("    v_lshl_add_u32 v16, v17, 3, v16")
    E("    v_mov_b32 v18, v16")
    E("    s_lshl_b32 s26, s24, 6")
    E("    v_add_u32 v16, s26, v16")
    E("    v_xor_b32 v16, v16, v10")
    E("    v_add_u32 v16, v16, v11")
    E("    v_add_u32 v16, 16384, v16")
    E("    s_lshl_b32 s27, s21, 18")
    E("    s_lshl_b32 s28, s20, 16")
    E("    s_add_u32 s27, s27, s28")
    E("    s_lshl_b32 s28, s20, 15")
    E("    s_mov_b32 s29, 0")
    E("    s_mov_b32 s30, 0")
    def dma():
        E("    s_lshl_b32 s31, s29, 7")
        E("    s_add_u32 s31, s31, s27")
        E("    s_lshl_b32 s32, s20, 12")
        E("    s_add_u32 s32, s32, s30")
        for i in range(4):
            E(f"    s_add_u32 s33, s32, {i*1024}")
            E("    s_mov_b32 m0, s33")
            E(f"    s_add_u32 s34, s31, {i*8*2048}")
            E("    s_nop 0")
            E(f"    buffer_load_dwordx4 v{2+(i&1)}, s[8:11], s34 offen lds")
        E("    s_lshl_b32 s31, s29, 17")
        E("    s_add_u32 s31, s31, s28")
        E("    s_lshl_b32 s32, s20, 11")
        E("    s_add_u32 s32, s32, s30")
        E("    s_add_u32 s32, s32, 16384")
        for i in range(2):
            E(f"    s_add_u32 s33, s32, {i*1024}")
            E("    s_mov_b32 m0, s33")
            E(f"    s_add_u32 s34, s31, {i*8*2048}")
            E("    s_nop 0")
            E(f"    buffer_load_dwordx4 v4, s[12:15], s34 offen lds")
        E("    s_add_u32 s29, s29, 1")
        E("    s_add_u32 s30, s30, 24576")
        E("    s_cmp_ge_u32 s30, 73728")
        E("    s_cselect_b32 s30, 0, s30")
    for r in range(32):
        E(f"    v_mov_b32 v{64+r}, 0")
    dma(); dma()
    E("    s_mov_b32 s35, 0")
    E("    s_mov_b32 s36, 0")
    E(f"{L}_fin_loop:")
    E("    s_cmp_lt_u32 s35, 15")
    E(f"    s_cbranch_scc1 {L}_fin_w6")
    E("    s_waitcnt vmcnt(0)")
    E(f"    s_branch {L}_fin_wd")
    E(f"{L}_fin_w6:")
    E("    s_waitcnt vmcnt(6)")
    E(f"{L}_fin_wd:")
    E("    s_barrier")
    E("    s_cmp_lt_u32 s29, 16")
    E(f"    s_cbranch_scc0 {L}_fin_nodma")
    dma()
    E(f"{L}_fin_nodma:")
    for i in range(5):
        E(f"    v_add_u32 v{20+i}, s36, v{12+i}")
    def rd(sx, bb):
        for mt in range(2):
            E(f"    ds_read_b128 v[{28+bb+4*mt}:{31+bb+4*mt}], v{20+sx} offset:{mt*4096}")
        for kq in range(2):
            E(f"    ds_read_b64_tr_b16 v[{36+bb+2*kq}:{37+bb+2*kq}], v24 offset:{sx*16*128+kq*4*128}")
    rd(0, 0)
    for sx in range(4):
        bb = (sx & 1) * 12
        if sx < 3:
            rd(sx+1, 12-bb)
            E("    s_waitcnt lgkmcnt(4)")
        else:
            E("    s_waitcnt lgkmcnt(0)")
        for mt in range(2):
            acc = 64 + mt*16
            E(f"    v_mfma_f32_32x32x16_bf16 v[{acc}:{acc+15}], v[{36+bb}:{39+bb}], v[{28+bb+4*mt}:{31+bb+4*mt}], v[{acc}:{acc+15}]")
    E("    s_add_u32 s36, s36, 24576")
    E("    s_cmp_ge_u32 s36, 73728")
    E("    s_cselect_b32 s36, 0, s36")
    E("    s_add_u32 s35, s35, 1")
    E("    s_cmp_lt_u32 s35, 16")
    E(f"    s_cbranch_scc1 {L}_fin_loop")
    E("    s_lshl_b32 s26, s21, 7")
    E("    s_lshl_b32 s27, s23, 6")
    E("    s_add_u32 s26, s26, s27")
    E("    v_add_u32 v20, s26, v7")
    E("    v_lshlrev_b32 v21, 2, v20")
    E("    buffer_load_dword v22, v21, s[64:67], 0 offen")
    E("    buffer_load_dword v23, v21, s[64:67], 0 offen offset:128")
    E("    v_lshlrev_b32 v20, 11, v20")
    E("    v_lshl_add_u32 v20, v8, 3, v20")
    E("    s_lshl_b32 s26, s22, 7")
    E("    s_lshl_b32 s27, s24, 6")
    E("    s_add_u32 s26, s26, s27")
    E("    v_add_u32 v20, s26, v20")
    E("    v_and_b32 v10, 15, v1")
    E("    v_lshrrev_b32 v10, 2, v10")
    E("    v_lshl_add_u32 v10, v8, 2, v10")
    E("    s_lshl_b32 s26, s24, 5")
    E("    v_add_u32 v10, s26, v10")
    E("    v_lshlrev_b32 v10, 8, v10")
    E("    v_add_u32 v10, v10, v18")
    E("    s_lshl_b32 s26, s23, 7")
    E("    v_add_u32 v10, s26, v10")
    E("    v_add_u32 v10, 73728, v10")
    for mt in range(2):
        for a in range(4):
            E(f"    ds_read_b64_tr_b16 v[{100+(mt*4+a)*2}:{101+(mt*4+a)*2}], v10 offset:{a*8*256+mt*64}")
    E("    s_waitcnt vmcnt(0) lgkmcnt(0)")
    E("    v_sub_f32 v24, 1.0, v22")
    E("    v_sub_f32 v25, 1.0, v23")
    E("    v_cvt_pk_bf16_f32 v24, v24, v25")
    unpack(25, 26, 24)
    for mt in range(2):
        g = 22 + mt; og = 25 + mt
        for a in range(4):
            acc = 64 + mt*16 + 4*a; ab = 100+(mt*4+a)*2
            E(f"    v_cvt_pk_bf16_f32 v40, v{acc}, v{acc+1}")
            E(f"    v_cvt_pk_bf16_f32 v41, v{acc+2}, v{acc+3}")
            unpack(42, 43, 40); unpack(44, 45, 41)
            unpack(46, 47, ab); unpack(48, 49, ab+1)
            for q in range(4):
                E(f"    v_mul_f32 v{42+q}, v{42+q}, v{og}")
                E(f"    v_mul_f32 v{46+q}, v{46+q}, v{g}")
            E("    v_cvt_pk_bf16_f32 v40, v42, v43")
            E("    v_cvt_pk_bf16_f32 v41, v44, v45")
            E("    v_cvt_pk_bf16_f32 v50, v46, v47")
            E("    v_cvt_pk_bf16_f32 v51, v48, v49")
            unpack(42, 43, 40); unpack(44, 45, 41)
            unpack(46, 47, 50); unpack(48, 49, 51)
            for q in range(4):
                E(f"    v_add_f32 v{42+q}, v{42+q}, v{46+q}")
            E(f"    v_cvt_pk_bf16_f32 v{ab}, v42, v43")
            E(f"    v_cvt_pk_bf16_f32 v{ab+1}, v44, v45")
            if mt == 0:
                E(f"    buffer_store_dwordx2 v[{ab}:{ab+1}], v20, s[16:19], 0 offen offset:{a*16}")
            else:
                E(f"    s_mov_b32 s27, {32*2048}")
                E(f"    buffer_store_dwordx2 v[{ab}:{ab+1}], v20, s[16:19], s27 offen offset:{a*16}")
    E("    s_endpgm")

STAMP = os.environ.get("STAMP","") != ""
def stamp(i):
    if not STAMP: return
    E(f"    s_memtime s[{92}:{93}]")
    E("    s_waitcnt lgkmcnt(0)")
    E(f"    s_mov_b32 s{94+i}, s92")
def stamp_dump(n):
    if not STAMP: return
    E("    s_load_dwordx2 s[92:93], s[0:1], 112")
    E("    s_waitcnt lgkmcnt(0)")
    srd(44, 92, 93, 256)
    E("    v_cmp_eq_u32 vcc, 0, v0")
    E("    s_and_saveexec_b64 s[24:25], vcc")
    E("    s_cmp_lg_u32 s2, 1")
    E("    s_cbranch_scc1 stamp_skip%d" % len(out))
    lab = "stamp_skip%d" % (len(out)-1)
    E("    v_mov_b32 v1, 0")
    for i in range(n):
        E(f"    v_mov_b32 v2, s{94+i}")
        E(f"    buffer_store_dword v2, v1, s[44:47], 0 offen offset:{4*i}")
    E(lab + ":")
def common_prologue():
    E("    s_load_dwordx2 s[4:5], s[0:1], 0")
    E("    s_load_dwordx2 s[6:7], s[0:1], 120")
    E("    s_waitcnt lgkmcnt(0)")

import os
SKIP = os.environ.get("SKIP","").split(",")
def build(stage):
    E("; generated by dev/gen.py")
    E("; @launch kernel=k1_kernel grid=(768,1,1) block=(256,1,1) lds=81920")
    E("; @launch kernel=k2_kernel grid=(256,1,1) block=(256,1,1) lds=129024")
    E("; @launch kernel=k3_kernel grid=(256,1,1) block=(256,1,1) lds=90112")
    E('.amdgcn_target "amdgcn-amd-amdhsa--gfx950"')
    kernel_begin("k1_kernel")
    common_prologue()
    E("    s_cmp_lt_u32 s2, 256")
    E("    s_cbranch_scc1 " + ("kx_end" if "k1_kg" in SKIP else "k1_kg"))
    E("    s_sub_u32 s2, s2, 256")
    E("    s_cmp_lt_u32 s2, 256")
    E("    s_cbranch_scc1 " + ("kx_end" if "k1_qkv" in SKIP else "k1_qkv"))
    E("    s_sub_u32 s2, s2, 256")
    E("    s_cmp_lt_u32 s2, 256")
    E("    s_cbranch_scc1 " + ("kx_end" if "k1_tr" in SKIP else "k1_tr"))
    E("    s_endpgm")
    role_qkv("k1")
    role_kgen("k1")
    role_transpose("k1")
    E("kx_end:")
    E("    s_endpgm")
    kernel_begin("k2_kernel")
    common_prologue()
    E("    s_cmp_lt_u32 s2, 256")
    E("    s_cbranch_scc1 k2_main")
    E("    s_endpgm")
    role_k2("k2")
    kernel_begin("k3_kernel")
    common_prologue()
    E("    s_cmp_lt_u32 s2, 256")
    E("    s_cbranch_scc1 k3_fin")
    E("    s_endpgm")
    role_final("k3")
    kernel_desc("k1_kernel", 160)
    kernel_desc("k2_kernel", 256)
    kernel_desc("k3_kernel", 128)

if __name__ == "__main__":
    build(sys.argv[1] if len(sys.argv) > 1 else "a")
    open(sys.argv[2] if len(sys.argv) > 2 else "cur.s", "w").write("\n".join(out) + "\n")
```
